```python
import torch

def _softmax(x, axis=-1):
    return torch.softmax(x, dim=axis)
def _gelu(x):
    return torch.nn.functional.gelu(x, approximate="tanh")
def _silu(x):
    return torch.nn.functional.silu(x)
def _sigmoid(x):
    return torch.sigmoid(x)
def _layernorm(x, axis=-1, eps=1e-5):
    m = x.mean(dim=axis, keepdim=True)
    v = x.var(dim=axis, keepdim=True, unbiased=False)
    return (x - m) / torch.sqrt(v + eps)
def _scatter_add(tgt, idx, src, axis=0):
    return tgt.clone().index_add_(axis, idx, src)
def _segment_sum(src, seg, n):
    out = torch.zeros((n,) + src.shape[1:], dtype=src.dtype)
    return out.index_add_(0, seg, src)
def _pad(x, pw):
    flat = tuple(v for pair in reversed(pw) for v in pair)
    return torch.nn.functional.pad(x, flat)

kernel_name = 'sequential_preLN__mha_block__dense_activation_gelu__prompt'

def setup_inputs():

    _w = (lambda a: (lambda t: t.to(torch.bfloat16) if t.is_floating_point() else t)(torch.as_tensor(a)))
    def _A_setup():
        B, S, D, H = 1, 2048, 1024, 32
        return {
            "x": _w((lambda *s: torch.randn(*s, dtype=torch.bfloat16) * 0.05)(B, S, D)),
            "wqkv": _w((lambda *s: torch.randn(*s, dtype=torch.bfloat16) * 0.05)(D, 3 * D)),
            "wo": _w((lambda *s: torch.randn(*s, dtype=torch.bfloat16) * 0.05)(D, D)),
        }
    _A_in = _A_setup()

    def _B_setup():
        B, S, D, F = 1, 2048, 1024, 3584
        return {
            "x": _w((lambda *s: torch.randn(*s, dtype=torch.bfloat16) * 0.05)(B, S, D)),
            "w1": _w((lambda *s: torch.randn(*s, dtype=torch.bfloat16) * 3.2)(D, F) * (D ** -0.5)),
            "b1": _w((lambda *s: torch.randn(*s, dtype=torch.bfloat16) * 3.2)(F) * 0.01),
            "w2": _w((lambda *s: torch.randn(*s, dtype=torch.bfloat16) * 0.4)(F, D) * (F ** -0.5)),
            "b2": _w((lambda *s: torch.randn(*s, dtype=torch.bfloat16) * 0.4)(D) * 0.01),
        }
    _B_in = _B_setup()

    return {
        "A_x": _A_in["x"],
        "A_wqkv": _A_in["wqkv"],
        "A_wo": _A_in["wo"],
        "B_x": _B_in["x"],
        "B_w1": _B_in["w1"],
        "B_b1": _B_in["b1"],
        "B_w2": _B_in["w2"],
        "B_b2": _B_in["b2"],
    }

def reference(A_x, A_wqkv, A_wo, B_x, B_w1, B_b1, B_w2, B_b2):
    def _A_ref(x, wqkv, wo):
        B, S, D = x.shape
        H = 32
        Dh = D // H
        qkv = (lambda x, *d: x.permute(*d))((x @ wqkv).reshape(B, S, 3, H, Dh), 2, 0, 3, 1, 4)
        q, k, v = qkv[0], qkv[1], qkv[2]
        scores = torch.einsum("bhqd,bhkd->bhqk", q, k) * (Dh ** -0.5)
        p = _softmax(scores, axis=-1)
        o = torch.einsum("bhqk,bhkd->bhqd", p, v)
        return (lambda x, *d: x.permute(*d))(o, 0, 2, 1, 3).reshape(B, S, D) @ wo

    def _B_ref(x, w1, b1, w2, b2):
        h = torch.einsum("bsd,df->bsf", x, w1) + b1
        h = _gelu(h)
        return torch.einsum("bsf,fd->bsd", h, w2) + b2

    x = A_x
    h = x + _A_ref(_layernorm(x, axis=-1), A_wqkv, A_wo)
    h2 = h + _B_ref(_layernorm(h, axis=-1), B_w1, B_b1, B_w2, B_b2)
    return h2
```

```python
from kg import *
KA_X, KA_WQKV, KA_WO, KA_BX, KA_W1, KA_B1, KA_W2, KA_B2, KA_OUT, KA_DBG, KA_WS = 0, 8, 16, 24, 32, 40, 48, 56, 64, 72, 80
MB = 1 << 20
WS_XN, WS_Q, WS_K, WS_V, WS_O, WS_H = 0, 4*MB, 8*MB, 12*MB, 16*MB, 20*MB
WS_H1 = 24*MB
WS_STAT = 40*MB
WS_CS1 = 41*MB
SZ_H1 = 2048*3584*2
PREFIX = "sequential_preLN__mha_block__dense_activation_gelu__prompt"

class Stamps:
    def __init__(self, on, kidx): self.on = on; self.k = kidx; self.n = 0
    def init(self, e):
        if self.on: e.i("s_load_dwordx2 s[56:57], s[0:1], %d" % KA_DBG)
    def stamp(self, e):
        if self.on:
            e.i(f"s_memtime s[{60+4*self.n}:{61+4*self.n}]\ns_memrealtime s[{62+4*self.n}:{63+4*self.n}]")
            self.n += 1
    def flush(self, e, swave):
        if not self.on: return
        e.i("s_waitcnt lgkmcnt(0)")
        e.i(f"""s_mov_b32 s58, 0x1000000
        s_mov_b32 s59, 0x00020000
        s_lshl_b32 s54, s2, 3
        s_add_u32 s54, s54, s{swave}
        s_lshl_b32 s54, s54, 6
        s_add_u32 s54, s54, {self.k*256*8*64}
        v_mov_b32 v2, s54""")
        for i in range(self.n):
            e.i(f"v_mov_b32 v4, s{60+4*i}\nv_mov_b32 v5, s{62+4*i}\nbuffer_store_dwordx2 v[4:5], v2, s[56:59], 0 offen offset:{8*i}")
```

```python
from common import *

class Cfg:
    def __init__(s, **k): s.__dict__.update(k)

S_M, S_W = 8, 12
S_WAVE, S_MB, S_NB, S_SLOT, S_CNT, S_MT, S_WT, S_T0, S_T1, S_T2, S_T3, S_T4 = 36, 37, 38, 39, 40, 41, 42, 43, 44, 45, 46, 47

def gemm_lds(c):
    mbytes = 8*c.KT*1024
    wbytes = c.KT*2*c.NB*1024
    return mbytes, wbytes, mbytes + wbytes

def emit_map(e, xm, xn):
    gm = 16//xm
    e.i(f"""s_and_b32 s{S_T0}, s2, 7
    s_lshr_b32 s{S_T1}, s2, 3
    s_and_b32 s{S_MB}, s{S_T0}, {gm-1}
    s_mul_i32 s{S_MB}, s{S_MB}, {xm}
    s_and_b32 s{S_T2}, s{S_T1}, {xm-1}
    s_add_u32 s{S_MB}, s{S_MB}, s{S_T2}
    s_lshr_b32 s{S_NB}, s{S_T0}, {gm.bit_length()-1}
    s_mul_i32 s{S_NB}, s{S_NB}, {xn}
    s_lshr_b32 s{S_T2}, s{S_T1}, {xm.bit_length()-1}
    s_add_u32 s{S_NB}, s{S_NB}, s{S_T2}""")

def emit_loader(e, c):
    NB, KT, S, NL = c.NB, c.KT, c.S, c.NL
    NT = c.K//(32*KT)
    mbytes, wbytes, stage = gemm_lds(c)
    MPW = 8//NL
    IW = KT*2*NB//NL
    assert (KT*2*NB) % NL == 0 and KT <= 4
    IPW = MPW*KT + IW
    NKS = c.K//32
    n = c.name
    e.c("---- loader")
    e.i(f"s_sub_u32 s{S_T0}, s{S_WAVE}, 4")
    e.i(f"""s_lshl_b32 s{S_T1}, s{S_MB}, 3
    s_mul_i32 s{S_T2}, s{S_T0}, {MPW}
    s_add_u32 s{S_T1}, s{S_T1}, s{S_T2}
    s_mul_i32 s{S_T1}, s{S_T1}, {NKS*1024}
    v_lshl_add_u32 v1, v0, 4, s{S_T1}""")
    for i in range(1, MPW):
        e.i(f"v_add_u32 v{1+i}, {i*NKS*1024}, v1")
    VW = 1 + MPW
    M, sh = magic_div(NB, 8*KT*NB)
    e.i(f"""v_lshrrev_b32 v40, 4, v0
    s_mul_i32 s{S_T1}, s{S_T0}, {4*IW}
    v_add_u32 v40, s{S_T1}, v40
    v_bfe_u32 v41, v0, 2, 2
    v_and_b32 v42, 3, v0
    s_mov_b32 s{S_T2}, {c.wstride}""")
    c.wcol_base(e, S_T1)
    swzbit = 1 if c.korder == 'natural' else 0
    for i in range(IW):
        e.i(f"""v_add_u32 v43, {4*i}, v40
        v_mul_u32_u24 v44, {M}, v43
        v_lshrrev_b32 v44, {sh}, v44
        v_mul_u32_u24 v45, {NB}, v44
        v_sub_u32 v45, v43, v45
        v_bfe_u32 v46, v44, {swzbit}, 1
        v_lshlrev_b32 v46, 1, v46
        v_xor_b32 v46, v46, v42
        v_lshl_add_u32 v46, v46, 4, s{S_T1}
        v_lshl_add_u32 v44, v44, 2, v41
        v_mul_lo_u32 v44, v44, s{S_T2}""")
        c.wcol_lane(e, 45, 47)
        e.i(f"v_add3_u32 v{VW+i}, v44, v45, v46")
    e.i(f"""s_mul_i32 s{S_T3}, s{S_T0}, {MPW*KT*1024}
    s_mul_i32 s{S_T4}, s{S_T0}, {IW*1024}
    s_add_u32 s{S_T4}, s{S_T4}, {mbytes}
    s_mov_b32 s{S_SLOT}, 0
    s_mov_b32 s{S_MT}, 0
    s_mov_b32 s{S_WT}, 0""")
    if getattr(c, 'loader_pre', None): c.loader_pre(e)
    def issue():
        e.i(f"s_add_u32 m0, s{S_SLOT}, s{S_T3}")
        for i in range(MPW):
            if i: e.i(f"s_add_u32 m0, m0, {KT*1024}")
            e.i("s_nop 0")
            for j in range(KT):
                e.i(f"buffer_load_dwordx4 v{1+i}, s[{S_M}:{S_M+3}], s{S_MT} offen offset:{j*1024} lds")
        e.i(f"s_add_u32 m0, s{S_SLOT}, s{S_T4}")
        for i in range(IW):
            if i: e.i(f"s_add_u32 m0, m0, 1024")
            e.i("s_nop 0")
            e.i(f"buffer_load_dwordx4 v{VW+i}, s[{S_W}:{S_W+3}], s{S_WT} offen lds")
        e.i(f"""s_add_u32 s{S_MT}, s{S_MT}, {KT*1024}
        s_add_u32 s{S_WT}, s{S_WT}, {32*KT*c.wstride}
        s_add_u32 s{S_SLOT}, s{S_SLOT}, {stage}
        s_cmp_eq_u32 s{S_SLOT}, {S*stage}
        s_cselect_b32 s{S_SLOT}, 0, s{S_SLOT}""")
    D = S - 1
    e.i(f"s_mov_b32 s{S_CNT}, {D}")
    lp = f"{n}_lpro"
    e.label(lp)
    issue()
    e.i(f"""s_sub_u32 s{S_CNT}, s{S_CNT}, 1
    s_cmp_lg_u32 s{S_CNT}, 0
    s_cbranch_scc1 {lp}""")
    e.i(f"s_mov_b32 s{S_CNT}, {NT-D}")
    lm = f"{n}_lmain"
    e.label(lm)
    e.i(f"s_waitcnt vmcnt({(D-1)*IPW})\ns_barrier")
    issue()
    e.i(f"""s_sub_u32 s{S_CNT}, s{S_CNT}, 1
    s_cmp_lg_u32 s{S_CNT}, 0
    s_cbranch_scc1 {lm}""")
    for i in range(D):
        e.i(f"s_waitcnt vmcnt({(D-1-i)*IPW})\ns_barrier")
    assert D*IPW <= 63, D*IPW

def acc(c, i, j): return c.VACC + (j*4 + i)*4

def emit_consumer_main(e, c):
    NB, KT, S = c.NB, c.KT, c.S
    NT = c.K//(32*KT)
    mbytes, wbytes, stage = gemm_lds(c)
    n = c.name
    SETSZ = 16 + 4*NB
    def mreg(p, i): return c.VF + p*SETSZ + 4*i
    def wreg(p, j): return c.VF + p*SETSZ + 16 + 4*j
    VM, VE, VO, VS = c.VA, c.VA+1, c.VA+2, c.VA+3
    VMC, VEC, VOC, VSC = c.VA+4, c.VA+5, c.VA+6, c.VA+7
    e.c("---- consumer setup")
    if c.korder == 'natural':  gterm = f"v_mul_u32_u24 v{VE}, {2*NB*256}, v1"; rho = NB*256
    elif c.korder == 'perm':   gterm = f"v_mul_u32_u24 v{VE}, {NB*256}, v1"; rho = 4*NB*256
    else:
        gterm = f"v_lshrrev_b32 v2, 1, v1\nv_and_b32 v3, 1, v1\nv_lshl_add_u32 v2, v2, 2, v3\nv_mul_u32_u24 v{VE}, {NB*256}, v2"; rho = 2*NB*256
    e.i(f"""s_lshr_b32 s{S_T0}, s{S_WAVE}, 1
    s_mul_i32 s{S_T0}, s{S_T0}, {4*KT*1024}
    v_lshl_add_u32 v{VM}, v0, 4, s{S_T0}
    v_lshrrev_b32 v1, 4, v0
    {gterm}
    v_bfe_u32 v1, v0, 2, 2
    v_lshl_add_u32 v{VE}, v1, 6, v{VE}
    v_and_b32 v1, 3, v0
    v_lshl_add_u32 v{VE}, v1, 3, v{VE}
    v_add_u32 v{VE}, {mbytes}, v{VE}
    v_bfe_u32 v1, v0, 4, 1
    v_lshlrev_b32 v1, 5, v1
    s_and_b32 s{S_T0}, s{S_WAVE}, 1""")
    if c.s_nb is not None:
        e.i(f"""s_lshl_b32 s{S_T1}, s{S_T0}, 5
        v_xor_b32 v2, s{S_T1}, v1
        v_add_u32 v2, {c.s_nb*256}, v2
        v_add_u32 v{VS}, v{VE}, v2""")
    e.i(f"""s_mul_i32 s{S_T1}, s{S_T0}, {c.e_mul*256}
    v_xor_b32 v2, 32, v1
    v_add3_u32 v{VO}, v{VE}, v2, s{S_T1}
    v_add3_u32 v{VE}, v{VE}, v1, s{S_T1}""")
    z = c.VF
    e.i("\n".join(f"v_mov_b32 v{z+i}, 0" for i in range(4)))
    e.i("s_nop 1")
    for b in range(NB):
        a = c.VACC + 16*b
        e.i(f"v_mfma_f32_32x32x16_bf16 v[{a}:{a+15}], v[{z}:{z+3}], v[{z}:{z+3}], 0")
    if getattr(c, 'consumer_pre', None): c.consumer_pre(e)
    e.i(f"s_mov_b32 s{S_SLOT}, 0")
    def reads(p, ks):
        mm = [f"ds_read_b128 v[{mreg(p,i)}:{mreg(p,i)+3}], v{VMC} offset:{(i*KT+ks)*1024}" for i in range(4)]
        ww = []
        for j in range(NB):
            w = wreg(p, j)
            if c.s_nb is not None and j == NB-1: va, o = VSC, 0
            else: va, o = (VEC if j % 2 == 0 else VOC), (j//2)*256
            o0 = 8*ks*NB*256 + o
            ww.append(f"ds_read_b64_tr_b16 v[{w}:{w+1}], v{va} offset:{o0}")
            ww.append(f"ds_read_b64_tr_b16 v[{w+2}:{w+3}], v{va} offset:{o0 + rho}")
        return mm + ww
    def mfma(p, i, j):
        a = acc(c, i, j)
        w = wreg(p, j); m = mreg(p, i)
        if c.swap(j):
            return f"v_mfma_f32_16x16x32_bf16 v[{a}:{a+3}], v[{m}:{m+3}], v[{w}:{w+3}], v[{a}:{a+3}]"
        return f"v_mfma_f32_16x16x32_bf16 v[{a}:{a+3}], v[{w}:{w+3}], v[{m}:{m+3}], v[{a}:{a+3}]"
    def step(pm, ks, with_mfma=True, with_reads=True, pre=None):
        pr = pm ^ 1
        rs = reads(pr, ks) if with_reads else []
        if with_mfma: e.i("s_waitcnt lgkmcnt(0)")
        if pre: pre()
        for j in range(NB):
            for i in range(4):
                if with_mfma: e.i(mfma(pm, i, j))
                k = c.rrate if with_mfma else 100
                for _ in range(k):
                    if rs: e.i(rs.pop(0))
        assert not rs
    def newslot():
        e.i(f"v_add_u32 v{VMC}, s{S_SLOT}, v{VM}\nv_add_u32 v{VEC}, s{S_SLOT}, v{VE}\nv_add_u32 v{VOC}, s{S_SLOT}, v{VO}")
        if c.s_nb is not None: e.i(f"v_add_u32 v{VSC}, s{S_SLOT}, v{VS}")
        e.i(f"""s_add_u32 s{S_SLOT}, s{S_SLOT}, {stage}
        s_cmp_eq_u32 s{S_SLOT}, {S*stage}
        s_cselect_b32 s{S_SLOT}, 0, s{S_SLOT}""")
    e.i("s_barrier")
    if getattr(c, 'st', None): c.st.stamp(e); e.i("s_waitcnt lgkmcnt(0)") if c.st.on else None
    newslot()
    UN = c.unroll
    assert (KT*UN) % 2 == 0 and NT % UN == 0
    step(1, 0, with_mfma=False)
    e.i(f"s_mov_b32 s{S_CNT}, {NT//UN}")
    e.i(f"s_branch {n}_c1")
    lp = f"{n}_cloop"
    e(".p2align 6")
    e.label(lp)
    par = 1
    first = True
    for t in range(UN):
        for ks in range(KT):
            if ks == 0:
                def pre():
                    e.i("s_barrier")
                    newslot()
                step(par, ks, pre=pre)
            else:
                step(par, ks)
            if first:
                e.label(f"{n}_c1"); first = False
            par ^= 1
    e.i(f"""s_sub_u32 s{S_CNT}, s{S_CNT}, 1
    s_cmp_lg_u32 s{S_CNT}, 0
    s_cbranch_scc1 {lp}""")
    step(par, 0, with_reads=False)

def gemm_kernel(e, c, srds, epilogue, stamps=False, kidx=0):
    name = c.name
    st = Stamps(stamps, kidx); c.st = st
    kernel_head(e, name)
    e.i(f"s_cmp_ge_u32 s2, 256\ns_cbranch_scc1 {name}_end")
    fx = [load_srd(e, s, ka, add, sz) for (s, ka, add, sz) in srds]
    st.init(e); st.stamp(e)
    e.i(f"""v_lshrrev_b32 v1, 6, v0
    v_and_b32 v0, 63, v0
    s_nop 0
    v_readfirstlane_b32 s{S_WAVE}, v1""")
    emit_map(e, c.xm, c.xn)
    e.i("s_waitcnt lgkmcnt(0)")
    if st.on: st.stamp(e); e.i("s_waitcnt lgkmcnt(0)")
    for f in fx: f()
    e.i(f"s_cmp_ge_u32 s{S_WAVE}, 4\ns_cbranch_scc1 {name}_loader")
    emit_consumer_main(e, c)
    st.stamp(e)
    epilogue(e, c)
    e.i("s_waitcnt vmcnt(0)")
    st.stamp(e); st.flush(e, S_WAVE)
    e.i("s_endpgm")
    e.label(f"{name}_loader")
    emit_loader(e, c)
    if getattr(c, 'loader_post', None): c.loader_post(e)
    e.label(f"{name}_end")
    e.i("s_endpgm")
    kernel_desc(e, name, 256)
    return dict(name=name, grid=256, block=64*(4+c.NL), lds=c.lds_total, vgpr=256)
```

```python
from common import *
import struct
def f2u(x): return struct.unpack("<I", struct.pack("<f", x))[0]
S_Q, S_O = 8, 12
S_WAVE, S_HEAD, S_QB, S_SLOT, S_CNT, S_KOFF, S_VOFF, S_T0, S_T1, S_T2 = 36, 37, 38, 39, 40, 41, 42, 43, 44, 45
S_ISLOT, S_IST = 46, 47
NST = 16
SR = 4
STAGE = 16384
VQ = 8
VSEL = 16
VL = 20
VO = 24
VNEG = 40
VS = [56, 72]
VP = 88
VK = [96, 104]
VV = [112, 120]
VA_RD, VA_L, VA_NX = 4, 5, 6

def gen_attn(e, name, stamps=False, opt=None):
    opt = opt or {}
    st = Stamps(stamps, 2)
    kernel_head(e, name)
    e.i(f"s_cmp_ge_u32 s2, 256\ns_cbranch_scc1 {name}_end")
    f1 = load_srd(e, S_Q, KA_WS, WS_Q, 12*MB)
    f2 = load_srd(e, S_O, KA_WS, WS_O, 4*MB)
    st.init(e); st.stamp(e)
    e.i(f"""v_lshrrev_b32 v1, 6, v0
    v_and_b32 v0, 63, v0
    s_and_b32 s{S_T0}, s2, 7
    v_readfirstlane_b32 s{S_WAVE}, v1
    s_lshr_b32 s{S_T1}, s2, 3
    s_lshl_b32 s{S_HEAD}, s{S_T0}, 2
    s_lshr_b32 s{S_T2}, s{S_T1}, 3
    s_add_u32 s{S_HEAD}, s{S_HEAD}, s{S_T2}
    s_and_b32 s{S_QB}, s{S_T1}, 7
    s_lshl_b32 s{S_T0}, s{S_HEAD}, 17
    s_lshl_b32 s{S_T1}, s{S_WAVE}, 10
    s_add_u32 s{S_KOFF}, s{S_T0}, s{S_T1}
    s_add_u32 s{S_KOFF}, s{S_KOFF}, {4*MB}
    s_add_u32 s{S_VOFF}, s{S_KOFF}, {4*MB}
    v_lshlrev_b32 v{VA_L}, 4, v0
    s_lshl_b32 s{S_ISLOT}, s{S_WAVE}, 10
    s_mov_b32 s{S_IST}, 0
    s_waitcnt lgkmcnt(0)""")
    f1(); f2()
    def issue(check=True):
        if check:
            e.i(f"""s_cmp_lt_u32 s{S_IST}, {NST}
            s_cselect_b32 s{S_Q+2}, {12*MB}, 0
            s_add_u32 s{S_IST}, s{S_IST}, 1""")
        else:
            e.i(f"s_add_u32 s{S_IST}, s{S_IST}, 1")
        e.i(f"""s_mov_b32 m0, s{S_ISLOT}
        s_add_u32 s{S_T0}, s{S_ISLOT}, 8192
        buffer_load_dwordx4 v{VA_L}, s[{S_Q}:{S_Q+3}], s{S_KOFF} offen lds
        s_mov_b32 m0, s{S_T0}
        s_add_u32 s{S_KOFF}, s{S_KOFF}, 8192
        buffer_load_dwordx4 v{VA_L}, s[{S_Q}:{S_Q+3}], s{S_VOFF} offen lds
        s_add_u32 s{S_VOFF}, s{S_VOFF}, 8192
        s_add_u32 s{S_ISLOT}, s{S_ISLOT}, {STAGE}
        s_and_b32 s{S_ISLOT}, s{S_ISLOT}, {SR*STAGE-1}""")
    issue(False); issue(False)
    e.i(f"""s_lshl_b32 s{S_T0}, s{S_HEAD}, 6
    s_lshl_b32 s{S_T1}, s{S_QB}, 3
    s_add_u32 s{S_T0}, s{S_T0}, s{S_T1}
    s_add_u32 s{S_T0}, s{S_T0}, s{S_WAVE}
    s_lshl_b32 s48, s{S_T0}, 11
    buffer_load_dwordx4 v[{VQ}:{VQ+3}], v{VA_L}, s[{S_Q}:{S_Q+3}], s48 offen
    buffer_load_dwordx4 v[{VQ+4}:{VQ+7}], v{VA_L}, s[{S_Q}:{S_Q+3}], s48 offen offset:1024""")
    e.i(f"""v_and_b32 v1, 3, v0
    v_bfe_u32 v2, v0, 2, 1
    v_bfe_u32 v3, v0, 4, 1
    v_xor_b32 v2, v2, v3
    v_or_b32 v1, v1, v2
    v_cmp_eq_u32 vcc, 0, v1
    v_mov_b32 v2, 0x3f803f80
    s_nop 0
    v_cndmask_b32 v{VSEL}, 0, v2, vcc
    v_mov_b32 v{VSEL+1}, v{VSEL}
    v_mov_b32 v{VSEL+2}, v{VSEL}
    v_mov_b32 v{VSEL+3}, v{VSEL}""")
    for r in range(4): e.i(f"v_mov_b32 v{VL+r}, 0")
    for r in range(16): e.i(f"v_mov_b32 v{VO+r}, 0")
    e.i(f"v_lshlrev_b32 v{VA_RD}, 4, v0\ns_mov_b32 s{S_SLOT}, 0")
    e.i("s_waitcnt vmcnt(0)\ns_barrier")
    st.stamp(e)
    if st.on: e.i("s_waitcnt lgkmcnt(0)")
    issue(False)
    def rdK(p, kb, va): return [f"ds_read_b128 v[{VK[p]}:{VK[p]+3}], v{va} offset:{kb*2048}",
                                f"ds_read_b128 v[{VK[p]+4}:{VK[p]+7}], v{va} offset:{kb*2048+1024}"]
    def rdV(p, kb, va): return [f"ds_read_b128 v[{VV[p]}:{VV[p]+3}], v{va} offset:{8192+kb*2048}",
                                f"ds_read_b128 v[{VV[p]+4}:{VV[p]+7}], v{va} offset:{8192+kb*2048+1024}"]
    def qk0(sp, kp, cin): return f"v_mfma_f32_32x32x16_bf16 v[{VS[sp]}:{VS[sp]+15}], v[{VK[kp]}:{VK[kp]+3}], v[{VQ}:{VQ+3}], {cin}"
    def qk1(sp, kp): return f"v_mfma_f32_32x32x16_bf16 v[{VS[sp]}:{VS[sp]+15}], v[{VK[kp]+4}:{VK[kp]+7}], v[{VQ+4}:{VQ+7}], v[{VS[sp]}:{VS[sp]+15}]"
    def pv(p, h): return f"v_mfma_f32_32x32x16_bf16 v[{VO}:{VO+15}], v[{VV[p]+4*h}:{VV[p]+4*h+3}], v[{VP+4*h}:{VP+4*h+3}], v[{VO}:{VO+15}]"
    def ls(h): return f"v_mfma_f32_16x16x32_bf16 v[{VL}:{VL+3}], v[{VSEL}:{VSEL+3}], v[{VP+4*h}:{VP+4*h+3}], v[{VL}:{VL+3}]"
    NEG = f"v[{VNEG}:{VNEG+15}]"
    def tilemax(s, d, t):
        e.i(f"v_max3_f32 v{d}, v{s}, v{s+1}, v{s+2}")
        for r in range(3, 15, 2): e.i(f"v_max3_f32 v{d}, v{d}, v{s+r}, v{s+r+1}")
        e.i(f"""v_max_f32 v{d}, v{d}, v{s+15}
        v_mov_b32 v{t}, v{d}
        s_nop 1
        v_permlane32_swap_b32 v{t}, v{d}
        s_nop 1
        v_max_f32 v{d}, v{d}, v{t}""")
    for r in rdK(0, 0, VA_RD): e.i(r)
    e.i("s_waitcnt lgkmcnt(0)")
    e.i(qk0(0, 0, "0")); e.i(qk1(0, 0))
    for r in rdK(1, 1, VA_RD): e.i(r)
    for r in rdV(0, 0, VA_RD): e.i(r)
    e.i("s_nop 15\ns_nop 3")
    s = VS[0]
    tilemax(s, 1, 2)
    e.i("v_sub_f32 v1, 0, v1")
    for r in range(16): e.i(f"v_mov_b32 v{VNEG+r}, v1")
    for r in range(16): e.i(f"v_add_f32 v{s+r}, v{s+r}, v1")
    def ex(S, a):
        for q in range(a, a+4): e.i(f"v_exp_f32 v{S+q}, v{S+q}")
    def cv(S, a):
        e.i(f"v_cvt_pk_bf16_f32 v{VP+a//2}, v{S+a}, v{S+a+1}\nv_cvt_pk_bf16_f32 v{VP+a//2+1}, v{S+a+2}, v{S+a+3}")
    def e1(S, q): e.i(f"v_exp_f32 v{S+q}, v{S+q}")
    def c1(S, k): e.i(f"v_cvt_pk_bf16_f32 v{VP+k}, v{S+2*k}, v{S+2*k+1}")
    def kbody(kb, kaddr, vaddr, pre_k=None):
        g = kb & 1; n_ = g ^ 1; S = VS[g]
        nols = opt.get('nols'); norads = opt.get('nords'); nomf = opt.get('nomfma'); noexp = opt.get('noexp')
        def M(x):
            if not nomf: e.i(x)
        def L(h):
            if not nols and not nomf and not opt.get('valusum'): e.i(ls(h))
        def R(rs):
            if not norads:
                for r in rs: e.i(r)
        def W(n):
            if not norads: e.i(f"s_waitcnt lgkmcnt({n})")
        def X(*qs):
            for q in qs:
                if not noexp: e1(S, q)
        def C(*ks):
            for k in ks:
                c1(S, k)
                if opt.get('valusum'): e.i(f"v_pk_add_f32 v[{VL+2*(k&1)}:{VL+2*(k&1)+1}], v[{VL+2*(k&1)}:{VL+2*(k&1)+1}], v[{S+2*k}:{S+2*k+1}]")
        order = opt.get('order', 0)
        if order == 0:
            W(2); M(qk0(n_, n_, NEG)); X(0,1,2,3); M(pv(n_, 1)); C(0,1); X(4,5); L(1)
            if pre_k: pre_k()
            R(rdK(g, (kb+2) % 4, kaddr)); X(6,7); M(qk1(n_, n_)); R(rdV(n_, (kb+1) % 4, vaddr))
            C(2,3); X(8,9); W(4); M(pv(g, 0)); X(10,11,12); L(0); X(13,14,15); C(4,5,6,7)
        elif order == 1:
            W(2); M(qk0(n_, n_, NEG)); X(0,1); L(1); X(2,3); C(0,1)
            M(pv(n_, 1))
            if pre_k: pre_k()
            R(rdK(g, (kb+2) % 4, kaddr)); X(4,5,6,7); C(2,3)
            M(qk1(n_, n_)); R(rdV(n_, (kb+1) % 4, vaddr)); X(8,9,10,11); W(4)
            M(pv(g, 0)); C(4,5); X(12,13); L(0); X(14,15); C(6,7)
    for r in range(4, 8): e.i(f"v_mov_b32 v{VP+r}, 0\nv_mov_b32 v{VV[1]+r}, 0")
    if opt.get('prio'):
        e.i(f"s_cmp_ge_u32 s{S_WAVE}, 4\ns_cbranch_scc0 {name}_np\ns_setprio 1\n{name}_np:")
    e.i(f"s_mov_b32 s{S_CNT}, {NST}")
    lp = f"{name}_loop"
    e(".p2align 6")
    e.label(lp)
    kbody(0, VA_RD, VA_RD); kbody(1, VA_RD, VA_RD)
    def bar():
        if not opt.get('nobar'): e.i("s_waitcnt vmcnt(2)\ns_barrier")
        e.i(f"""s_add_u32 s{S_SLOT}, s{S_SLOT}, {STAGE}
        s_and_b32 s{S_SLOT}, s{S_SLOT}, {SR*STAGE-1}
        v_lshl_add_u32 v{VA_NX}, v0, 4, s{S_SLOT}""")
        issue(True)
    kbody(2, VA_NX, VA_RD, pre_k=bar)
    kbody(3, VA_NX, VA_NX)
    e.i(f"""v_mov_b32 v{VA_RD}, v{VA_NX}
    s_sub_u32 s{S_CNT}, s{S_CNT}, 1
    s_cmp_lg_u32 s{S_CNT}, 0
    s_cbranch_scc1 {lp}""")
    e.i("s_nop 1")
    e.i(pv(1, 1)); e.i(ls(1))
    st.stamp(e)
    e.i(f"""s_nop 15
    s_nop 3
    s_mov_b32 s{S_T0}, 0x5f800000
    v_cmp_nlt_f32 vcc, v{VL}, s{S_T0}""".replace(f"v_cmp_nlt_f32 vcc, v{VL}, s{S_T0}", f"v_mov_b32 v1, s{S_T0}\nv_cmp_nlt_f32 vcc, v{VL}, v1"))
    e.i(f"s_nop 4\ns_cbranch_vccnz {name}_slow")
    e.label(f"{name}_fin")
    e.i(f"""v_rcp_f32 v1, v{VL}
    s_lshl_b32 s{S_T0}, s{S_QB}, 4
    s_lshl_b32 s{S_T1}, s{S_WAVE}, 1
    s_add_u32 s{S_T0}, s{S_T0}, s{S_T1}
    s_lshl_b32 s{S_T0}, s{S_T0}, 5
    s_add_u32 s{S_T0}, s{S_T0}, s{S_HEAD}
    s_lshl_b32 s{S_T0}, s{S_T0}, 10
    v_mov_b32 v2, v1
    v_bfe_u32 v3, v0, 4, 1
    v_lshlrev_b32 v3, 15, v3
    v_lshrrev_b32 v4, 5, v0
    v_lshl_add_u32 v3, v4, 8, v3
    v_and_b32 v4, 15, v0
    v_lshl_add_u32 v3, v4, 4, v3
    v_add_u32 v3, s{S_T0}, v3
    v_mov_b32 v5, v1
    v_mov_b32 v4, v1""")
    for r in range(0, 16, 2): e.i(f"v_pk_mul_f32 v[{VO+r}:{VO+r+1}], v[{VO+r}:{VO+r+1}], v[4:5]")
    for r in range(8): e.i(f"v_cvt_pk_bf16_f32 v{VP+r}, v{VO+2*r}, v{VO+2*r+1}")
    e.i(f"""buffer_store_dwordx4 v[{VP}:{VP+3}], v3, s[{S_O}:{S_O+3}], 0 offen
    buffer_store_dwordx4 v[{VP+4}:{VP+7}], v3, s[{S_O}:{S_O+3}], 0 offen offset:512
    s_waitcnt vmcnt(0)""")
    st.stamp(e); st.flush(e, S_WAVE)
    e.i("s_endpgm")
    e.label(f"{name}_slow")
    e.i(f"""s_waitcnt vmcnt(0) lgkmcnt(0)
    s_mov_b32 s{S_Q+2}, {12*MB}
    s_lshl_b32 s{S_T0}, s{S_HEAD}, 17
    s_add_u32 s{S_KOFF}, s{S_T0}, {4*MB}
    s_add_u32 s{S_VOFF}, s{S_T0}, {8*MB}
    v_mov_b32 v7, 0xff800000""")
    for r in range(4): e.i(f"v_mov_b32 v{VL+r}, 0")
    for r in range(16): e.i(f"v_mov_b32 v{VO+r}, 0")
    e.i(f"s_mov_b32 s{S_CNT}, 64")
    e.label(f"{name}_sloop")
    e.i(f"""buffer_load_dwordx4 v[{VK[0]}:{VK[0]+3}], v{VA_L}, s[{S_Q}:{S_Q+3}], s{S_KOFF} offen
    buffer_load_dwordx4 v[{VK[0]+4}:{VK[0]+7}], v{VA_L}, s[{S_Q}:{S_Q+3}], s{S_KOFF} offen offset:1024
    buffer_load_dwordx4 v[{VV[0]}:{VV[0]+3}], v{VA_L}, s[{S_Q}:{S_Q+3}], s{S_VOFF} offen
    buffer_load_dwordx4 v[{VV[0]+4}:{VV[0]+7}], v{VA_L}, s[{S_Q}:{S_Q+3}], s{S_VOFF} offen offset:1024
    s_add_u32 s{S_KOFF}, s{S_KOFF}, 2048
    s_add_u32 s{S_VOFF}, s{S_VOFF}, 2048
    s_waitcnt vmcnt(0)""")
    e.i(qk0(0, 0, "0")); e.i(qk1(0, 0))
    e.i("s_nop 15\ns_nop 3")
    tilemax(s, 1, 2)
    e.i(f"""v_max_f32 v1, v1, v7
    v_sub_f32 v2, v7, v1
    v_exp_f32 v2, v2
    v_mov_b32 v7, v1
    s_nop 0
    v_mul_f32 v{VL}, v{VL}, v2""")
    for r in range(16): e.i(f"v_mul_f32 v{VO+r}, v{VO+r}, v2")
    for r in range(16): e.i(f"v_sub_f32 v{s+r}, v{s+r}, v1")
    for a in range(0, 16, 4):
        ex(s, a); cv(s, a)
    e.i("s_nop 1")
    e.i(pv(0, 0)); e.i(ls(0)); e.i(pv(0, 1)); e.i(ls(1))
    e.i(f"""s_nop 15
    s_nop 3
    s_sub_u32 s{S_CNT}, s{S_CNT}, 1
    s_cmp_lg_u32 s{S_CNT}, 0
    s_cbranch_scc1 {name}_sloop
    s_branch {name}_fin""")
    e.label(f"{name}_end")
    e.i("s_endpgm")
    kernel_desc(e, name, 128)
    return dict(name=name, grid=256, block=512, lds=SR*STAGE, vgpr=128)
```

```python
from common import *
S_Q, S_O = 8, 12
S_WAVE, S_HEAD, S_QB, S_CNT, S_KOFF, S_VOFF, S_T0, S_T1, S_T2 = 36, 37, 38, 40, 41, 42, 43, 44, 45
VSEL = 4
VA_L = 1
VQ = [8, 16]
VL = [24, 28]
VO = [32, 48]
VNEG = [64, 80]
VS = [[96, 112], [128, 144]]
VP = [160, 168]
VK = [176, 184, 192, 200]
VV = [208, 216, 224, 232]
NV = 240

def gen_attn2(e, name, stamps=False, opt=None):
    opt = opt or {}
    st = Stamps(stamps, 2)
    kernel_head(e, name)
    e.i(f"s_cmp_ge_u32 s2, 256\ns_cbranch_scc1 {name}_end")
    f1 = load_srd(e, S_Q, KA_WS, WS_Q, 12*MB)
    f2 = load_srd(e, S_O, KA_WS, WS_O, 4*MB)
    st.init(e); st.stamp(e)
    e.i(f"""v_lshrrev_b32 v2, 6, v0
    v_and_b32 v0, 63, v0
    s_and_b32 s{S_T0}, s2, 7
    v_readfirstlane_b32 s{S_WAVE}, v2
    s_lshr_b32 s{S_T1}, s2, 3
    s_lshl_b32 s{S_HEAD}, s{S_T0}, 2
    s_lshr_b32 s{S_T2}, s{S_T1}, 3
    s_add_u32 s{S_HEAD}, s{S_HEAD}, s{S_T2}
    s_and_b32 s{S_QB}, s{S_T1}, 7
    s_lshl_b32 s{S_T0}, s{S_HEAD}, 17
    s_add_u32 s{S_KOFF}, s{S_T0}, {4*MB}
    s_add_u32 s{S_VOFF}, s{S_T0}, {8*MB}
    v_lshlrev_b32 v{VA_L}, 4, v0
    s_lshl_b32 s{S_T0}, s{S_HEAD}, 6
    s_lshl_b32 s{S_T1}, s{S_QB}, 3
    s_add_u32 s{S_T0}, s{S_T0}, s{S_T1}
    s_lshl_b32 s{S_T1}, s{S_WAVE}, 1
    s_add_u32 s{S_T0}, s{S_T0}, s{S_T1}
    s_lshl_b32 s48, s{S_T0}, 11
    s_add_u32 s49, s48, 2048
    s_waitcnt lgkmcnt(0)""")
    f1(); f2()
    def ldK(slot):
        e.i(f"""buffer_load_dwordx4 v[{VK[slot]}:{VK[slot]+3}], v{VA_L}, s[{S_Q}:{S_Q+3}], s{S_KOFF} offen
        buffer_load_dwordx4 v[{VK[slot]+4}:{VK[slot]+7}], v{VA_L}, s[{S_Q}:{S_Q+3}], s{S_KOFF} offen offset:1024
        s_add_u32 s{S_KOFF}, s{S_KOFF}, 2048""")
    def ldV(slot):
        e.i(f"""buffer_load_dwordx4 v[{VV[slot]}:{VV[slot]+3}], v{VA_L}, s[{S_Q}:{S_Q+3}], s{S_VOFF} offen
        buffer_load_dwordx4 v[{VV[slot]+4}:{VV[slot]+7}], v{VA_L}, s[{S_Q}:{S_Q+3}], s{S_VOFF} offen offset:1024
        s_add_u32 s{S_VOFF}, s{S_VOFF}, 2048""")
    for b in range(2):
        e.i(f"""buffer_load_dwordx4 v[{VQ[b]}:{VQ[b]+3}], v{VA_L}, s[{S_Q}:{S_Q+3}], s{48+b} offen
        buffer_load_dwordx4 v[{VQ[b]+4}:{VQ[b]+7}], v{VA_L}, s[{S_Q}:{S_Q+3}], s{48+b} offen offset:1024""")
    ldK(0)
    for i in range(3):
        ldK(i+1); ldV(i)
    e.i(f"""v_and_b32 v2, 3, v0
    v_bfe_u32 v3, v0, 2, 1
    v_bfe_u32 v{VSEL}, v0, 4, 1
    v_xor_b32 v3, v3, v{VSEL}
    v_or_b32 v2, v2, v3
    v_cmp_eq_u32 vcc, 0, v2
    v_mov_b32 v3, 0x3f803f80
    s_nop 0
    v_cndmask_b32 v{VSEL}, 0, v3, vcc
    v_mov_b32 v{VSEL+1}, v{VSEL}
    v_mov_b32 v{VSEL+2}, v{VSEL}
    v_mov_b32 v{VSEL+3}, v{VSEL}""")
    for b in range(2):
        for r in range(4): e.i(f"v_mov_b32 v{VL[b]+r}, 0")
        for r in range(16): e.i(f"v_mov_b32 v{VO[b]+r}, 0")
        for r in range(4, 8): e.i(f"v_mov_b32 v{VP[b]+r}, 0")
    def qk0(b, sp, ks, cin): return f"v_mfma_f32_32x32x16_bf16 v[{VS[b][sp]}:{VS[b][sp]+15}], v[{VK[ks]}:{VK[ks]+3}], v[{VQ[b]}:{VQ[b]+3}], {cin}"
    def qk1(b, sp, ks): return f"v_mfma_f32_32x32x16_bf16 v[{VS[b][sp]}:{VS[b][sp]+15}], v[{VK[ks]+4}:{VK[ks]+7}], v[{VQ[b]+4}:{VQ[b]+7}], v[{VS[b][sp]}:{VS[b][sp]+15}]"
    def pv(b, vs, h): return f"v_mfma_f32_32x32x16_bf16 v[{VO[b]}:{VO[b]+15}], v[{VV[vs]+4*h}:{VV[vs]+4*h+3}], v[{VP[b]+4*h}:{VP[b]+4*h+3}], v[{VO[b]}:{VO[b]+15}]"
    def ls(b, h): return f"v_mfma_f32_16x16x32_bf16 v[{VL[b]}:{VL[b]+3}], v[{VSEL}:{VSEL+3}], v[{VP[b]+4*h}:{VP[b]+4*h+3}], v[{VL[b]}:{VL[b]+3}]"
    def NEG(b): return f"v[{VNEG[b]}:{VNEG[b]+15}]"
    def tilemax(s, d, t):
        e.i(f"v_max3_f32 v{d}, v{s}, v{s+1}, v{s+2}")
        for r in range(3, 15, 2): e.i(f"v_max3_f32 v{d}, v{d}, v{s+r}, v{s+r+1}")
        e.i(f"""v_max_f32 v{d}, v{d}, v{s+15}
        v_mov_b32 v{t}, v{d}
        s_nop 1
        v_permlane32_swap_b32 v{t}, v{d}
        s_nop 1
        v_max_f32 v{d}, v{d}, v{t}""")
    for r in range(4, 8): e.i(f"v_mov_b32 v{VV[3]+r}, 0")
    e.i("s_waitcnt vmcnt(12)")
    st.stamp(e)
    for b in range(2):
        e.i(qk0(b, 0, 0, "0")); e.i(qk1(b, 0, 0))
    e.i("s_nop 15\ns_nop 3")
    for b in range(2):
        s = VS[b][0]
        tilemax(s, 2, 3)
        e.i("v_sub_f32 v2, 0, v2")
        for r in range(16): e.i(f"v_mov_b32 v{VNEG[b]+r}, v2")
        for r in range(16): e.i(f"v_add_f32 v{s+r}, v{s+r}, v2")
    def half(b, kb, extra=None):
        g = kb & 1; n_ = g ^ 1; S = VS[b][g]
        kn = (kb+1) % 4; vc = kb; vp = (kb-1) % 4
        def X(*qs):
            for q in qs: e.i(f"v_exp_f32 v{S+q}, v{S+q}")
        def C(*ks):
            for k in ks: e.i(f"v_cvt_pk_bf16_f32 v{VP[b]+k}, v{S+2*k}, v{S+2*k+1}")
        def Z(i):
            if extra and i in extra: extra[i]()
        e.i(qk0(b, n_, kn, NEG(b))); X(0,1,2,3); e.i(pv(b, vp, 1)); Z(0); C(0,1); X(4,5); e.i(ls(b, 1)); Z(1); X(6,7)
        e.i(qk1(b, n_, kn)); Z(2); C(2,3); X(8,9); e.i(pv(b, vc, 0)); Z(3); X(10,11,12); e.i(ls(b, 0)); X(13,14,15); C(4,5,6,7)
    e.i(f"s_mov_b32 s{S_CNT}, 16")
    lp = f"{name}_loop"
    e(".p2align 6")
    e.label(lp)
    for kb in range(4):
        if not opt.get('nowait') and not opt.get('noload'): e.i("s_waitcnt vmcnt(8)")
        half(0, kb)
        if opt.get('noload'): half(1, kb)
        elif opt.get('spread'):
            def one(reg, soff, off, adv):
                def f():
                    e.i(f"buffer_load_dwordx4 v[{reg}:{reg+3}], v{VA_L}, s[{S_Q}:{S_Q+3}], s{soff} offen offset:{off}")
                    if adv: e.i(f"s_add_u32 s{soff}, s{soff}, 2048")
                return f
            vsl = (kb-1) % 4
            half(1, kb, extra={0: one(VK[kb], S_KOFF, 0, False), 1: one(VK[kb]+4, S_KOFF, 1024, True), 2: one(VV[vsl], S_VOFF, 0, False), 3: one(VV[vsl]+4, S_VOFF, 1024, True)})
        else: half(1, kb, extra={1: (lambda kb=kb: ldK(kb)), 2: (lambda kb=kb: ldV((kb-1) % 4))})
    e.i(f"""s_sub_u32 s{S_CNT}, s{S_CNT}, 1
    s_cmp_lg_u32 s{S_CNT}, 0
    s_cbranch_scc1 {lp}""")
    e.i("s_nop 1")
    for b in range(2):
        e.i(pv(b, 3, 1)); e.i(ls(b, 1))
    st.stamp(e)
    e.i(f"""s_nop 15
    s_nop 3
    v_mov_b32 v2, 0x5f800000
    v_max_f32 v3, v{VL[0]}, v{VL[1]}
    v_cmp_nlt_f32 vcc, v{VL[0]}, v2
    v_cmp_nlt_f32 s[50:51], v{VL[1]}, v2
    s_nop 4
    s_or_b64 vcc, vcc, s[50:51]
    s_cbranch_vccnz {name}_slow""")
    e.label(f"{name}_fin")
    e.i(f"""s_lshl_b32 s{S_T0}, s{S_QB}, 4
    s_lshl_b32 s{S_T1}, s{S_WAVE}, 2
    s_add_u32 s{S_T0}, s{S_T0}, s{S_T1}
    s_lshl_b32 s{S_T0}, s{S_T0}, 5
    s_add_u32 s{S_T0}, s{S_T0}, s{S_HEAD}
    s_lshl_b32 s{S_T0}, s{S_T0}, 10
    v_bfe_u32 v3, v0, 4, 1
    v_lshlrev_b32 v3, 15, v3
    v_lshrrev_b32 v2, 5, v0
    v_lshl_add_u32 v3, v2, 8, v3
    v_and_b32 v2, 15, v0
    v_lshl_add_u32 v3, v2, 4, v3
    v_add_u32 v3, s{S_T0}, v3""")
    for b in range(2):
        e.i(f"v_rcp_f32 v4, v{VL[b]}\ns_nop 0\nv_mov_b32 v5, v4")
        for r in range(0, 16, 2): e.i(f"v_pk_mul_f32 v[{VO[b]+r}:{VO[b]+r+1}], v[{VO[b]+r}:{VO[b]+r+1}], v[4:5]")
        for r in range(8): e.i(f"v_cvt_pk_bf16_f32 v{VP[b]+r}, v{VO[b]+2*r}, v{VO[b]+2*r+1}")
        e.i(f"""s_mov_b32 s{S_T1}, {b*65536}
        buffer_store_dwordx4 v[{VP[b]}:{VP[b]+3}], v3, s[{S_O}:{S_O+3}], s{S_T1} offen
        buffer_store_dwordx4 v[{VP[b]+4}:{VP[b]+7}], v3, s[{S_O}:{S_O+3}], s{S_T1} offen offset:512""")
    e.i("s_waitcnt vmcnt(0)")
    st.stamp(e); st.flush(e, S_WAVE)
    e.i("s_endpgm")
    e.label(f"{name}_slow")
    e.i(f"""s_waitcnt vmcnt(0)
    s_lshl_b32 s{S_T0}, s{S_HEAD}, 17
    s_add_u32 s{S_KOFF}, s{S_T0}, {4*MB}
    s_add_u32 s{S_VOFF}, s{S_T0}, {8*MB}""")
    VM_ = [VNEG[0], VNEG[1]]
    for b in range(2):
        e.i(f"v_mov_b32 v{VM_[b]}, 0xff800000")
        for r in range(4): e.i(f"v_mov_b32 v{VL[b]+r}, 0")
        for r in range(16): e.i(f"v_mov_b32 v{VO[b]+r}, 0")
    e.i(f"s_mov_b32 s{S_CNT}, 64")
    e.label(f"{name}_sloop")
    ldK(0); ldV(0)
    e.i("s_waitcnt vmcnt(0)")
    for b in range(2):
        s = VS[b][0]
        e.i(qk0(b, 0, 0, "0")); e.i(qk1(b, 0, 0))
        e.i("s_nop 15\ns_nop 3")
        tilemax(s, 2, 3)
        e.i(f"""v_max_f32 v2, v2, v{VM_[b]}
        v_sub_f32 v3, v{VM_[b]}, v2
        v_exp_f32 v3, v3
        v_mov_b32 v{VM_[b]}, v2
        s_nop 0
        v_mul_f32 v{VL[b]}, v{VL[b]}, v3""")
        for r in range(16): e.i(f"v_mul_f32 v{VO[b]+r}, v{VO[b]+r}, v3")
        for r in range(16): e.i(f"v_sub_f32 v{s+r}, v{s+r}, v2")
        for r in range(16): e.i(f"v_exp_f32 v{s+r}, v{s+r}")
        e.i("s_nop 0")
        for k in range(8): e.i(f"v_cvt_pk_bf16_f32 v{VP[b]+k}, v{s+2*k}, v{s+2*k+1}")
        e.i("s_nop 1")
        e.i(pv(b, 0, 0)); e.i(ls(b, 0)); e.i(pv(b, 0, 1)); e.i(ls(b, 1))
        e.i("s_nop 15\ns_nop 3")
    e.i(f"""s_sub_u32 s{S_CNT}, s{S_CNT}, 1
    s_cmp_lg_u32 s{S_CNT}, 0
    s_cbranch_scc1 {name}_sloop
    s_branch {name}_fin""")
    e.label(f"{name}_end")
    e.i("s_endpgm")
    kernel_desc(e, name, NV)
    return dict(name=name, grid=256, block=256, lds=98304, vgpr=NV)
```

```python
from common import *
S_Q, S_O, S_P = 8, 12, 16
S_WAVE, S_HEAD, S_QB, S_CNT, S_KOFF, S_VOFF, S_T0, S_T1, S_T2, S_QI, S_KH = 36, 37, 38, 40, 41, 42, 43, 44, 45, 46, 47
VSEL = 4
VA_L = 1
VQ = [8, 16]
VL = [24, 28]
VO = [32, 48]
VNEG = [64, 80]
VS = [[96, 112], [128, 144]]
VP = [160, 168]
VK = [176, 184, 192, 200]
VV = [208, 216, 224, 232]
VPF = 240
NV = 244
NKB = 32

def gen_attn3(e, name, stamps=False, opt=None):
    opt = opt or {}
    st = Stamps(stamps, 2)
    kernel_head(e, name)
    e.i(f"s_cmp_ge_u32 s2, 256\ns_cbranch_scc1 {name}_end")
    f1 = load_srd(e, S_Q, KA_WS, WS_Q, 12*MB)
    f2 = load_srd(e, S_O, KA_WS, WS_O, 4*MB)
    pf = not opt.get('nopf')
    if pf:
        e.i(f"s_load_dwordx2 s[20:21], s[0:1], {KA_WO}\ns_load_dwordx2 s[22:23], s[0:1], {KA_W2}\ns_load_dwordx2 s[24:25], s[0:1], {KA_W1}")
    st.init(e); st.stamp(e)
    e.i(f"""v_lshrrev_b32 v2, 6, v0
    v_and_b32 v0, 63, v0
    s_and_b32 s{S_T0}, s2, 7
    v_readfirstlane_b32 s{S_WAVE}, v2
    s_lshr_b32 s{S_T1}, s2, 3
    s_lshl_b32 s{S_HEAD}, s{S_T0}, 2
    s_lshr_b32 s{S_T2}, s{S_T1}, 3
    s_add_u32 s{S_HEAD}, s{S_HEAD}, s{S_T2}
    s_and_b32 s{S_QB}, s{S_T1}, 7
    s_and_b32 s{S_QI}, s{S_WAVE}, 3
    s_lshr_b32 s{S_KH}, s{S_WAVE}, 2
    s_lshl_b32 s{S_T0}, s{S_HEAD}, 17
    s_add_u32 s50, s{S_T0}, {4*MB}
    s_lshl_b32 s{S_T1}, s{S_KH}, 16
    s_add_u32 s{S_KOFF}, s50, s{S_T1}
    s_add_u32 s{S_VOFF}, s{S_KOFF}, {4*MB}
    v_lshlrev_b32 v{VA_L}, 4, v0
    s_lshl_b32 s{S_T0}, s{S_HEAD}, 6
    s_lshl_b32 s{S_T1}, s{S_QB}, 3
    s_add_u32 s{S_T0}, s{S_T0}, s{S_T1}
    s_lshl_b32 s{S_T1}, s{S_QI}, 1
    s_add_u32 s{S_T0}, s{S_T0}, s{S_T1}
    s_lshl_b32 s48, s{S_T0}, 11
    s_add_u32 s49, s48, 2048
    s_waitcnt lgkmcnt(0)""")
    f1(); f2()
    def ld2(reg, soff, adv=True):
        e.i(f"""buffer_load_dwordx4 v[{reg}:{reg+3}], v{VA_L}, s[{S_Q}:{S_Q+3}], s{soff} offen
        buffer_load_dwordx4 v[{reg+4}:{reg+7}], v{VA_L}, s[{S_Q}:{S_Q+3}], s{soff} offen offset:1024""")
        if adv: e.i(f"s_add_u32 s{soff}, s{soff}, {0 if opt.get('same') else 2048}")
    def ldK(slot): ld2(VK[slot], S_KOFF)
    def ldV(slot): ld2(VV[slot], S_VOFF)
    for b in range(2): ld2(VQ[b], 48+b, False)
    ld2(VV[3], 50, False)
    ldK(0)
    for i in range(3):
        ldK(i+1); ldV(i)
    e.i(f"""v_and_b32 v2, 3, v0
    v_bfe_u32 v3, v0, 2, 1
    v_bfe_u32 v{VSEL}, v0, 4, 1
    v_xor_b32 v3, v3, v{VSEL}
    v_or_b32 v2, v2, v3
    v_cmp_eq_u32 vcc, 0, v2
    v_mov_b32 v3, 0x3f803f80
    s_nop 0
    v_cndmask_b32 v{VSEL}, 0, v3, vcc
    v_mov_b32 v{VSEL+1}, v{VSEL}
    v_mov_b32 v{VSEL+2}, v{VSEL}
    v_mov_b32 v{VSEL+3}, v{VSEL}""")
    for b in range(2):
        for r in range(4): e.i(f"v_mov_b32 v{VL[b]+r}, 0")
        for r in range(16): e.i(f"v_mov_b32 v{VO[b]+r}, 0")
        for r in range(4, 8): e.i(f"v_mov_b32 v{VP[b]+r}, 0")
    if pf:
        e.i(f"""s_lshl_b32 s{S_T0}, s2, 3
        s_add_u32 s{S_T0}, s{S_T0}, s{S_WAVE}
        v_lshlrev_b32 v{VPF}, 7, v0
        s_mov_b32 s{S_P+3}, 0x00020000
        s_cmp_lt_u32 s{S_T0}, 256
        s_cbranch_scc0 {name}_pf1
        s_mov_b32 s{S_P}, s20
        s_mov_b32 s{S_P+1}, s21
        s_mov_b32 s{S_P+2}, {2*MB}
        s_branch {name}_pf3""")
        e.label(f"{name}_pf1")
        e.i(f"""s_sub_u32 s{S_T0}, s{S_T0}, 256
        s_cmp_lt_u32 s{S_T0}, 896
        s_cbranch_scc0 {name}_pf2
        s_mov_b32 s{S_P}, s22
        s_mov_b32 s{S_P+1}, s23
        s_mov_b32 s{S_P+2}, {3584*2048}
        s_branch {name}_pf3""")
        e.label(f"{name}_pf2")
        e.i(f"""s_sub_u32 s{S_T0}, s{S_T0}, 896
        s_mov_b32 s{S_P}, s24
        s_mov_b32 s{S_P+1}, s25
        s_mov_b32 s{S_P+2}, {3584*2048}""")
        e.label(f"{name}_pf3")
        e.i(f"s_lshl_b32 s51, s{S_T0}, 13")
    def qk0(b, sp, kr, cin): return f"v_mfma_f32_32x32x16_bf16 v[{VS[b][sp]}:{VS[b][sp]+15}], v[{kr}:{kr+3}], v[{VQ[b]}:{VQ[b]+3}], {cin}"
    def qk1(b, sp, kr): return f"v_mfma_f32_32x32x16_bf16 v[{VS[b][sp]}:{VS[b][sp]+15}], v[{kr+4}:{kr+7}], v[{VQ[b]+4}:{VQ[b]+7}], v[{VS[b][sp]}:{VS[b][sp]+15}]"
    def pv(b, vs, h): return f"v_mfma_f32_32x32x16_bf16 v[{VO[b]}:{VO[b]+15}], v[{VV[vs]+4*h}:{VV[vs]+4*h+3}], v[{VP[b]+4*h}:{VP[b]+4*h+3}], v[{VO[b]}:{VO[b]+15}]"
    def ls(b, h): return f"v_mfma_f32_16x16x32_bf16 v[{VL[b]}:{VL[b]+3}], v[{VSEL}:{VSEL+3}], v[{VP[b]+4*h}:{VP[b]+4*h+3}], v[{VL[b]}:{VL[b]+3}]"
    def NEG(b): return f"v[{VNEG[b]}:{VNEG[b]+15}]"
    def tilemax(s, d, t):
        e.i(f"v_max3_f32 v{d}, v{s}, v{s+1}, v{s+2}")
        for r in range(3, 15, 2): e.i(f"v_max3_f32 v{d}, v{d}, v{s+r}, v{s+r+1}")
        e.i(f"""v_max_f32 v{d}, v{d}, v{s+15}
        v_mov_b32 v{t}, v{d}
        s_nop 1
        v_permlane32_swap_b32 v{t}, v{d}
        s_nop 1
        v_max_f32 v{d}, v{d}, v{t}""")
    e.i("s_waitcnt vmcnt(12)")
    st.stamp(e)
    for b in range(2):
        e.i(qk0(b, 1, VV[3], "0")); e.i(qk1(b, 1, VV[3]))
    e.i("s_nop 15\ns_nop 3")
    for b in range(2):
        tilemax(VS[b][1], 2, 3)
        e.i("v_sub_f32 v2, 0, v2")
        for r in range(16): e.i(f"v_mov_b32 v{VNEG[b]+r}, v2")
    for r in range(4, 8): e.i(f"v_mov_b32 v{VV[3]+r}, 0")
    e.i("s_nop 1")
    for b in range(2):
        e.i(qk0(b, 0, VK[0], NEG(b))); e.i(qk1(b, 0, VK[0]))
    e.i("s_nop 7")
    def half(b, kb, extra=None):
        g = kb & 1; n_ = g ^ 1; S = VS[b][g]
        kn = (kb+1) % 4; vc = kb; vp = (kb-1) % 4
        def X(*qs):
            for q in qs: e.i(f"v_exp_f32 v{S+q}, v{S+q}")
        def C(*ks):
            for k in ks: e.i(f"v_cvt_pk_bf16_f32 v{VP[b]+k}, v{S+2*k}, v{S+2*k+1}")
        def Z(i):
            if extra and i in extra: extra[i]()
        e.i(qk0(b, n_, VK[kn], NEG(b))); X(0,1,2,3); e.i(pv(b, vp, 1)); Z(0); C(0,1); X(4,5); e.i(ls(b, 1)); Z(1); X(6,7)
        e.i(qk1(b, n_, VK[kn])); Z(2); C(2,3); X(8,9); e.i(pv(b, vc, 0)); Z(3); X(10,11,12); e.i(ls(b, 0)); X(13,14,15); C(4,5,6,7)
    if opt.get('prio'):
        e.i(f"s_cmp_eq_u32 s{S_KH}, 1\ns_cbranch_scc0 {name}_np\ns_setprio 1\n{name}_np:")
    e.i(f"s_mov_b32 s{S_CNT}, {NKB//4}")
    if pf:
        e.i(f"buffer_load_dword v{VPF+1}, v{VPF}, s[{S_P}:{S_P+3}], s51 offen")
    lp = f"{name}_loop"
    e(".p2align 6")
    e.label(lp)
    for kb in range(4):
        e.i("s_waitcnt vmcnt(8)")
        if opt.get('bar') and kb % opt['bar'] == 0: e.i("s_barrier")
        if opt.get('flip'):
            e.i(f"s_setprio {1 if kb % 2 == 0 else 0}" if False else "")
        half(0, kb)
        if opt.get('noload'): half(1, kb)
        elif opt.get('spread'):
            def one(reg, soff, off, adv):
                def f():
                    e.i(f"buffer_load_dwordx4 v[{reg}:{reg+3}], v{VA_L}, s[{S_Q}:{S_Q+3}], s{soff} offen offset:{off}")
                    if adv: e.i(f"s_add_u32 s{soff}, s{soff}, {0 if opt.get('same') else 2048}")
                return f
            vsl = (kb-1) % 4
            half(1, kb, extra={0: one(VK[kb], S_KOFF, 0, False), 1: one(VK[kb]+4, S_KOFF, 1024, True), 2: one(VV[vsl], S_VOFF, 0, False), 3: one(VV[vsl]+4, S_VOFF, 1024, True)})
        else: half(1, kb, extra={1: (lambda kb=kb: ldK(kb)), 2: (lambda kb=kb: ldV((kb-1) % 4))})
    e.i(f"""s_sub_u32 s{S_CNT}, s{S_CNT}, 1
    s_cmp_lg_u32 s{S_CNT}, 0
    s_cbranch_scc1 {lp}""")
    e.i("s_nop 1")
    for b in range(2):
        e.i(pv(b, 3, 1)); e.i(ls(b, 1))
    st.stamp(e)
    e.i(f"""s_nop 15
    s_nop 3
    s_mul_i32 s{S_T0}, s{S_QI}, {9*1024}
    v_lshl_add_u32 v2, v0, 4, s{S_T0}
    s_cmp_eq_u32 s{S_KH}, 0
    s_cbranch_scc1 {name}_rd""")
    for b in range(2):
        for q in range(4):
            e.i(f"ds_write_b128 v2, v[{VO[b]+4*q}:{VO[b]+4*q+3}] offset:{(b*4+q)*1024}")
    e.i(f"""v_mov_b32 v{VL[0]+1}, v{VL[1]}
    ds_write_b64 v2, v[{VL[0]}:{VL[0]+1}] offset:{8*1024}
    s_waitcnt vmcnt(0) lgkmcnt(0)
    s_barrier""")
    n_save = st.n
    st.stamp(e); st.flush(e, S_WAVE)
    st.n = n_save
    e.i("s_endpgm")
    e.label(f"{name}_rd")
    e.i("s_waitcnt vmcnt(0)\ns_barrier")
    for b in range(2):
        for q in range(4):
            r = VS[b][0] + 4*q
            e.i(f"ds_read_b128 v[{r}:{r+3}], v2 offset:{(b*4+q)*1024}")
    e.i(f"ds_read_b64 v[{VK[0]}:{VK[0]+1}], v2 offset:{8*1024}\ns_waitcnt lgkmcnt(0)")
    for b in range(2):
        for r in range(0, 16, 2):
            e.i(f"v_pk_add_f32 v[{VO[b]+r}:{VO[b]+r+1}], v[{VO[b]+r}:{VO[b]+r+1}], v[{VS[b][0]+r}:{VS[b][0]+r+1}]")
        e.i(f"v_add_f32 v{VL[b]}, v{VL[b]}, v{VK[0]+b}")
    e.i(f"""v_mov_b32 v2, 0x5f800000
    v_cmp_nlt_f32 vcc, v{VL[0]}, v2
    v_cmp_nlt_f32 s[52:53], v{VL[1]}, v2
    s_nop 4
    s_or_b64 vcc, vcc, s[52:53]
    s_cbranch_vccnz {name}_slow""")
    e.label(f"{name}_fin")
    e.i(f"""s_lshl_b32 s{S_T0}, s{S_QB}, 4
    s_lshl_b32 s{S_T1}, s{S_QI}, 2
    s_add_u32 s{S_T0}, s{S_T0}, s{S_T1}
    s_lshl_b32 s{S_T0}, s{S_T0}, 5
    s_add_u32 s{S_T0}, s{S_T0}, s{S_HEAD}
    s_lshl_b32 s{S_T0}, s{S_T0}, 10
    v_bfe_u32 v3, v0, 4, 1
    v_lshlrev_b32 v3, 15, v3
    v_lshrrev_b32 v2, 5, v0
    v_lshl_add_u32 v3, v2, 8, v3
    v_and_b32 v2, 15, v0
    v_lshl_add_u32 v3, v2, 4, v3
    v_add_u32 v3, s{S_T0}, v3""")
    for b in range(2):
        e.i(f"v_rcp_f32 v4, v{VL[b]}\ns_nop 0\nv_mov_b32 v5, v4")
        for r in range(0, 16, 2): e.i(f"v_pk_mul_f32 v[{VO[b]+r}:{VO[b]+r+1}], v[{VO[b]+r}:{VO[b]+r+1}], v[4:5]")
        for r in range(8): e.i(f"v_cvt_pk_bf16_f32 v{VP[b]+r}, v{VO[b]+2*r}, v{VO[b]+2*r+1}")
        e.i(f"""s_mov_b32 s{S_T1}, {b*65536}
        buffer_store_dwordx4 v[{VP[b]}:{VP[b]+3}], v3, s[{S_O}:{S_O+3}], s{S_T1} offen@SC@
        buffer_store_dwordx4 v[{VP[b]+4}:{VP[b]+7}], v3, s[{S_O}:{S_O+3}], s{S_T1} offen offset:512@SC@""")
    e.i("s_waitcnt vmcnt(0)")
    st.stamp(e); st.flush(e, S_WAVE)
    e.i("s_endpgm")
    e.label(f"{name}_slow")
    e.i(f"""s_waitcnt vmcnt(0)
    s_mov_b32 s{S_KOFF}, s50
    s_add_u32 s{S_VOFF}, s50, {4*MB}""")
    VM_ = [VNEG[0], VNEG[1]]
    for b in range(2):
        e.i(f"v_mov_b32 v{VM_[b]}, 0xff800000")
        for r in range(4): e.i(f"v_mov_b32 v{VL[b]+r}, 0")
        for r in range(16): e.i(f"v_mov_b32 v{VO[b]+r}, 0")
    e.i(f"s_mov_b32 s{S_CNT}, 64")
    e.label(f"{name}_sloop")
    ldK(0); ldV(0)
    e.i("s_waitcnt vmcnt(0)")
    for b in range(2):
        s = VS[b][0]
        e.i(qk0(b, 0, VK[0], "0")); e.i(qk1(b, 0, VK[0]))
        e.i("s_nop 15\ns_nop 3")
        tilemax(s, 2, 3)
        e.i(f"""v_max_f32 v2, v2, v{VM_[b]}
        v_sub_f32 v3, v{VM_[b]}, v2
        v_exp_f32 v3, v3
        v_mov_b32 v{VM_[b]}, v2
        s_nop 0
        v_mul_f32 v{VL[b]}, v{VL[b]}, v3""")
        for r in range(16): e.i(f"v_mul_f32 v{VO[b]+r}, v{VO[b]+r}, v3")
        for r in range(16): e.i(f"v_sub_f32 v{s+r}, v{s+r}, v2")
        for r in range(16): e.i(f"v_exp_f32 v{s+r}, v{s+r}")
        e.i("s_nop 0")
        for k in range(8): e.i(f"v_cvt_pk_bf16_f32 v{VP[b]+k}, v{s+2*k}, v{s+2*k+1}")
        e.i("s_nop 1")
        e.i(pv(b, 0, 0)); e.i(ls(b, 0)); e.i(pv(b, 0, 1)); e.i(ls(b, 1))
        e.i("s_nop 15\ns_nop 3")
    e.i(f"""s_sub_u32 s{S_CNT}, s{S_CNT}, 1
    s_cmp_lg_u32 s{S_CNT}, 0
    s_cbranch_scc1 {name}_sloop
    s_branch {name}_fin""")
    e.label(f"{name}_end")
    e.i("s_endpgm")
    kernel_desc(e, name, NV)
    return dict(name=name, grid=256, block=512, lds=4*9*1024, vgpr=NV)
```

```python
from gemm import *
import math, struct
def f2u(x): return struct.unpack("<I", struct.pack("<f", x))[0]
S_O, S_A, S_B = 16, 20, 24

def gen_qkv(e, name, stamps=False):
    c = Cfg(name=name, NB=6, KT=2, S=3, NL=2, unroll=2, rrate=1, K=1024, wstride=6144, korder='natural',
            VACC=128, VF=32, VA=8, e_mul=3, s_nb=None, swap=lambda j: j >= 4, xm=8, xn=4)
    c.lds_total = gemm_lds(c)[2]*c.S
    c.wcol_base = lambda e, s: e.i(f"s_lshl_b32 s{s}, s{S_NB}, 7")
    def wl(e, v, t):
        e.i(f"""v_mul_u32_u24 v{t}, 43, v{v}
        v_lshrrev_b32 v{t}, 7, v{t}
        v_mad_i32_i24 v{v}, v{t}, -3, v{v}
        v_lshlrev_b32 v{v}, 11, v{v}
        v_lshl_add_u32 v{v}, v{t}, 6, v{v}""")
    c.wcol_lane = wl
    def epi(e, c):
        qs = f2u(math.log2(math.e)/math.sqrt(32.0))
        e.i(f"""s_lshl_b32 s{S_T0}, s{S_NB}, 1
        s_and_b32 s{S_T1}, s{S_WAVE}, 1
        s_add_u32 s{S_T0}, s{S_T0}, s{S_T1}
        s_lshl_b32 s{S_T0}, s{S_T0}, 6
        s_lshl_b32 s{S_T1}, s{S_MB}, 2
        s_add_u32 s{S_T0}, s{S_T0}, s{S_T1}
        s_and_b32 s{S_T1}, s{S_WAVE}, 2
        s_add_u32 s{S_T0}, s{S_T0}, s{S_T1}
        s_lshl_b32 s{S_T0}, s{S_T0}, 11
        v_lshrrev_b32 v1, 5, v0
        v_lshlrev_b32 v1, 10, v1
        v_bfe_u32 v2, v0, 4, 1
        v_lshl_add_u32 v1, v2, 9, v1
        v_add_u32 v1, s{S_T0}, v1
        v_and_b32 v2, 15, v0
        v_lshl_add_u32 v16, v2, 4, v1
        v_bfe_u32 v3, v0, 3, 1
        v_and_b32 v2, 7, v0
        v_lshl_add_u32 v2, v3, 4, v2
        v_lshl_add_u32 v17, v2, 4, v1
        s_mov_b32 s{S_T1}, {4*MB}
        s_mov_b32 s{S_T2}, {8*MB}
        s_mov_b32 s{S_T3}, {qs}
        s_mov_b32 s{S_T4}, {qs}""")
        T = 32
        def pack(t, a, b):
            e.i(f"""v_cvt_pk_bf16_f32 v{t}, v{a}, v{a+1}
            v_cvt_pk_bf16_f32 v{t+1}, v{a+2}, v{a+3}
            v_cvt_pk_bf16_f32 v{t+2}, v{b}, v{b+1}
            v_cvt_pk_bf16_f32 v{t+3}, v{b+2}, v{b+3}""")
        k = 0
        for i in range(4):
            t = T + 4*k; k += 1
            pack(t, acc(c,i,2), acc(c,i,3))
            e.i(f"buffer_store_dwordx4 v[{t}:{t+3}], v17, s[{S_O}:{S_O+3}], s{S_T1} offen offset:{(i&1)*128 + (i>>1)*2048}@SC@")
        for tb in range(2):
            for ab in range(2):
                t = T + 4*k; k += 1
                pack(t, acc(c,2*tb,4+ab), acc(c,2*tb+1,4+ab))
                e.i(f"buffer_store_dwordx4 v[{t}:{t+3}], v16, s[{S_O}:{S_O+3}], s{S_T2} offen offset:{ab*256 + tb*2048}@SC@")
        for i in range(4):
            for j in range(2):
                a = acc(c,i,j)
                e.i(f"v_pk_mul_f32 v[{a}:{a+1}], v[{a}:{a+1}], s[{S_T3}:{S_T4}]\nv_pk_mul_f32 v[{a+2}:{a+3}], v[{a+2}:{a+3}], s[{S_T3}:{S_T4}]")
            t = T + 4*k; k += 1
            pack(t, acc(c,i,0), acc(c,i,1))
            e.i(f"buffer_store_dwordx4 v[{t}:{t+3}], v16, s[{S_O}:{S_O+3}], 0 offen offset:{(i&1)*256 + (i>>1)*2048}@SC@")
    def epi_wrap(e, c):
        e.i("s_nop 7")
        epi(e, c)
    assert S_T3 % 2 == 0 and S_T4 == S_T3+1
    return gemm_kernel(e, c, [(S_M, KA_WS, WS_XN, 4*MB), (S_W, KA_WQKV, 0, 1024*3072*2), (S_O, KA_WS, WS_Q, 12*MB)], epi_wrap, stamps, 1)

def rm_lane_addr(e, va, vb, base):
    e.i(f"""s_lshr_b32 s{S_T0}, s{S_WAVE}, 1
    s_lshl_b32 s{S_T0}, s{S_T0}, 13
    s_add_u32 s{S_T0}, s{S_T0}, {base}
    s_and_b32 s{S_T1}, s{S_WAVE}, 1
    s_lshl_b32 s{S_T1}, s{S_T1}, 2
    v_and_b32 v1, 15, v0
    v_lshrrev_b32 v2, 1, v1
    v_lshrrev_b32 v3, 5, v0
    v_add_u32 v3, s{S_T1}, v3
    v_lshl_add_u32 v1, v1, 7, s{S_T0}
    v_bfe_u32 v4, v0, 4, 1
    v_lshl_add_u32 v1, v4, 3, v1
    v_xor_b32 v4, v3, v2
    v_lshl_add_u32 v{va}, v4, 4, v1
    v_add_u32 v3, 2, v3
    v_xor_b32 v4, v3, v2
    v_lshl_add_u32 v{vb}, v4, 4, v1""")

def gen_wo(e, name, stamps=False):
    c = Cfg(name=name, NB=2, KT=2, S=5, NL=2, unroll=2, rrate=2, K=1024, wstride=2048, korder='att',
            VACC=128, VF=32, VA=8, e_mul=1, s_nb=None, swap=lambda j: False, xm=4, xn=8)
    ring = gemm_lds(c)[2]*c.S
    X0 = ring; SC = ring + 16384
    c.lds_total = SC + 2048
    c.wcol_base = lambda e, s: e.i(f"s_lshl_b32 s{s}, s{S_NB}, 7")
    c.wcol_lane = lambda e, v, t: e.i(f"v_lshlrev_b32 v{v}, 6, v{v}")
    def lpre(e):
        e.i(f"""s_lshl_b32 s{S_T1}, s{S_MB}, 7
        s_lshl_b32 s{S_T2}, s{S_T0}, 6
        s_add_u32 s{S_T1}, s{S_T1}, s{S_T2}
        s_lshl_b32 s{S_T1}, s{S_T1}, 11
        s_lshl_b32 s{S_T2}, s{S_NB}, 7
        s_add_u32 s{S_T1}, s{S_T1}, s{S_T2}
        v_lshrrev_b32 v50, 3, v0
        v_lshl_add_u32 v50, v50, 11, s{S_T1}
        v_lshrrev_b32 v51, 4, v0
        v_and_b32 v52, 7, v0
        v_xor_b32 v53, v52, v51
        v_lshl_add_u32 v54, v53, 4, v50
        v_xor_b32 v53, 4, v53
        v_lshl_add_u32 v55, v53, 4, v50
        s_lshl_b32 s{S_T2}, s{S_T0}, 13
        s_add_u32 m0, s{S_T2}, {X0}
        s_mov_b32 s{S_T1}, 0""")
        for I in range(8):
            e.i(f"buffer_load_dwordx4 v{54 + (I&1)}, s[{S_A}:{S_A+3}], s{S_T1} offen lds")
            e.i(f"s_add_u32 m0, m0, 1024\ns_add_u32 s{S_T1}, s{S_T1}, 16384")
    c.loader_pre = lpre
    def epi(e, c):
        rm_lane_addr(e, 16, 17, X0)
        for i in range(4):
            e.i(f"ds_read_b64 v[{32+4*i}:{33+4*i}], v16 offset:{i*2048}\nds_read_b64 v[{34+4*i}:{35+4*i}], v17 offset:{i*2048}")
        e.i(f"""s_lshl_b32 s{S_T0}, s{S_MB}, 3
        s_and_b32 s{S_T1}, s{S_WAVE}, 2
        s_lshl_b32 s{S_T1}, s{S_T1}, 1
        s_add_u32 s{S_T0}, s{S_T0}, s{S_T1}
        s_lshl_b32 s{S_T0}, s{S_T0}, 5
        s_lshl_b32 s{S_T1}, s{S_NB}, 1
        s_add_u32 s{S_T0}, s{S_T0}, s{S_T1}
        s_and_b32 s{S_T1}, s{S_WAVE}, 1
        s_add_u32 s{S_T0}, s{S_T0}, s{S_T1}
        s_lshl_b32 s{S_T0}, s{S_T0}, 10
        v_lshl_add_u32 v18, v0, 4, s{S_T0}
        s_waitcnt lgkmcnt(0)""")
        for i in range(4):
            a, b = acc(c,i,0), acc(c,i,1)
            x = 32+4*i
            e.i(f"""v_lshlrev_b32 v20, 16, v{x}
            v_and_b32 v21, 0xffff0000, v{x}
            v_lshlrev_b32 v22, 16, v{x+1}
            v_and_b32 v23, 0xffff0000, v{x+1}
            v_lshlrev_b32 v24, 16, v{x+2}
            v_and_b32 v25, 0xffff0000, v{x+2}
            v_lshlrev_b32 v26, 16, v{x+3}
            v_and_b32 v27, 0xffff0000, v{x+3}
            v_pk_add_f32 v[{a}:{a+1}], v[{a}:{a+1}], v[20:21]
            v_pk_add_f32 v[{a+2}:{a+3}], v[{a+2}:{a+3}], v[22:23]
            v_pk_add_f32 v[{b}:{b+1}], v[{b}:{b+1}], v[24:25]
            v_pk_add_f32 v[{b+2}:{b+3}], v[{b+2}:{b+3}], v[26:27]""")
            t = 64 + 4*i
            e.i(f"""v_cvt_pk_bf16_f32 v{t}, v{a}, v{a+1}
            v_cvt_pk_bf16_f32 v{t+1}, v{a+2}, v{a+3}
            v_cvt_pk_bf16_f32 v{t+2}, v{b}, v{b+1}
            v_cvt_pk_bf16_f32 v{t+3}, v{b+2}, v{b+3}
            s_mov_b32 s{S_T1}, {i*32768}
            buffer_store_dwordx4 v[{t}:{t+3}], v18, s[{S_O}:{S_O+3}], s{S_T1} offen@SC@""")
            s1, s2 = 80+2*i, 81+2*i
            e.i(f"""v_pk_add_f32 v[20:21], v[{a}:{a+1}], v[{a+2}:{a+3}]
            v_pk_add_f32 v[22:23], v[{b}:{b+1}], v[{b+2}:{b+3}]
            v_pk_mul_f32 v[24:25], v[{a}:{a+1}], v[{a}:{a+1}]
            v_pk_fma_f32 v[24:25], v[{a+2}:{a+3}], v[{a+2}:{a+3}], v[24:25]
            v_pk_fma_f32 v[24:25], v[{b}:{b+1}], v[{b}:{b+1}], v[24:25]
            v_pk_fma_f32 v[24:25], v[{b+2}:{b+3}], v[{b+2}:{b+3}], v[24:25]
            v_pk_add_f32 v[20:21], v[20:21], v[22:23]
            v_add_f32 v{s2}, v24, v25
            v_add_f32 v{s1}, v20, v21""")
        for sw in ("v_permlane32_swap_b32", "v_permlane16_swap_b32"):
            for r in range(8): e.i(f"v_mov_b32 v{88+r}, v{80+r}")
            e.i("s_nop 1")
            for r in range(8): e.i(f"{sw} v{88+r}, v{80+r}")
            e.i("s_nop 1")
            for r in range(8): e.i(f"v_add_f32 v{80+r}, v{80+r}, v{88+r}")
        e.i(f"""s_and_b32 s{S_T0}, s{S_WAVE}, 1
        s_lshl_b32 s{S_T0}, s{S_T0}, 10
        s_and_b32 s{S_T1}, s{S_WAVE}, 2
        s_lshl_b32 s{S_T1}, s{S_T1}, 8
        s_add_u32 s{S_T0}, s{S_T0}, s{S_T1}
        s_add_u32 s{S_T0}, s{S_T0}, {SC}
        v_and_b32 v1, 15, v0
        v_lshl_add_u32 v1, v1, 3, s{S_T0}""")
        for i in range(4):
            e.i(f"ds_write_b64 v1, v[{80+2*i}:{81+2*i}] offset:{i*128}")
        e.i("s_waitcnt lgkmcnt(0)\ns_barrier")
        e.i(f"""s_cmp_ge_u32 s{S_WAVE}, 2
        s_cbranch_scc1 {name}_nost
        s_lshl_b32 s{S_T0}, s{S_WAVE}, 6
        v_add_u32 v1, s{S_T0}, v0
        v_lshlrev_b32 v2, 3, v1
        v_add_u32 v3, {SC}, v2
        ds_read_b64 v[20:21], v3
        ds_read_b64 v[22:23], v3 offset:1024
        s_lshl_b32 s{S_T0}, s{S_NB}, 14
        s_lshl_b32 s{S_T1}, s{S_MB}, 10
        s_add_u32 s{S_T0}, s{S_T0}, s{S_T1}
        v_add_u32 v2, s{S_T0}, v2
        s_waitcnt lgkmcnt(0)
        v_pk_add_f32 v[20:21], v[20:21], v[22:23]
        buffer_store_dwordx2 v[20:21], v2, s[{S_B}:{S_B+3}], 0 offen@SC@""")
        e.label(f"{name}_nost")
    def epi_wrap(e, c):
        e.i("s_nop 7")
        epi(e, c)
    return gemm_kernel(e, c, [(S_M, KA_WS, WS_O, 4*MB), (S_W, KA_WO, 0, 2*MB), (S_O, KA_WS, WS_H, 4*MB),
                              (S_A, KA_X, 0, 4*MB), (S_B, KA_WS, WS_STAT, 256*1024)], epi_wrap, stamps, 3)

def gen_w1(e, name, stamps=False):
    c = Cfg(name=name, NB=7, KT=2, S=3, NL=2, unroll=2, rrate=1, K=1024, wstride=7168, korder='perm',
            VACC=128, VF=32, VA=8, e_mul=4, s_nb=3, swap=lambda j: False, xm=8, xn=4)
    ring = gemm_lds(c)[2]*c.S
    ST = ring; CS = ring + 1024; B1 = CS + 896
    c.lds_total = B1 + 896
    c.wcol_base = lambda e, s: e.i(f"s_mul_i32 s{s}, s{S_NB}, 448")
    c.wcol_lane = lambda e, v, t: e.i(f"v_lshlrev_b32 v{v}, 6, v{v}")
    S_B1 = 28
    def cpre(e):
        e.i(f"""s_lshl_b32 s{S_T0}, s{S_WAVE}, 6
        v_add_u32 v16, s{S_T0}, v0
        v_lshrrev_b32 v17, 1, v16
        v_and_b32 v18, 1, v16
        s_lshl_b32 s{S_T0}, s{S_MB}, 10
        v_lshl_add_u32 v19, v17, 3, s{S_T0}
        v_lshl_add_u32 v19, v18, 17, v19""")
        for q in range(8):
            e.i(f"s_mov_b32 s{S_T1}, {q*16384}\nbuffer_load_dwordx2 v[{40+2*q}:{41+2*q}], v19, s[{S_A}:{S_A+3}], s{S_T1} offen")
        e.i(f"""s_mul_i32 s{S_T0}, s{S_NB}, 896
        v_lshl_add_u32 v20, v16, 2, s{S_T0}
        s_mul_i32 s{S_T0}, s{S_NB}, 448
        v_lshl_add_u32 v21, v16, 1, s{S_T0}""")
        for q in range(16):
            e.i(f"s_mov_b32 s{S_T1}, {q*14336}\nbuffer_load_dword v{56+q}, v20, s[{S_B}:{S_B+3}], s{S_T1} offen")
        e.i(f"buffer_load_ushort v72, v21, s[{S_B1}:{S_B1+3}], 0 offen")
        e.i("s_waitcnt vmcnt(17)")
        for q in range(1, 8):
            e.i(f"v_pk_add_f32 v[40:41], v[40:41], v[{40+2*q}:{41+2*q}]")
        e.i("""s_nop 1
        v_add_f32_dpp v40, v40, v40 quad_perm:[1,0,3,2] row_mask:0xf bank_mask:0xf
        v_add_f32_dpp v41, v41, v41 quad_perm:[1,0,3,2] row_mask:0xf bank_mask:0xf
        v_mul_f32 v40, 0x3a800000, v40
        v_mul_f32 v41, 0x3a800000, v41
        v_fma_f32 v41, -v40, v40, v41
        v_add_f32 v41, 0x3727c5ac, v41
        v_rsq_f32 v42, v41
        s_nop 0
        v_mul_f32 v43, v40, v42
        v_sub_f32 v43, 0, v43""")
        e.i(f"""v_lshlrev_b32 v22, 3, v17
        v_add_u32 v22, {ST}, v22
        ds_write_b64 v22, v[42:43]
        s_waitcnt vmcnt(0)""")
        for q in range(1, 16):
            e.i(f"v_add_f32 v56, v56, v{56+q}")
        e.i(f"""v_lshlrev_b32 v72, 16, v72
        v_lshlrev_b32 v22, 2, v16
        v_add_u32 v22, {CS}, v22
        v_cmp_gt_u32 vcc, 224, v16
        s_and_saveexec_b64 s[48:49], vcc
        s_cbranch_execz {name}_ncs
        ds_write_b32 v22, v56
        ds_write_b32 v22, v72 offset:{B1-CS}""")
        e.label(f"{name}_ncs")
        e.i("s_mov_b64 exec, s[48:49]\ns_waitcnt lgkmcnt(0)")
    c.consumer_pre = cpre
    C1 = -2.0*math.log2(math.e)*math.sqrt(2.0/math.pi)
    C2 = C1*0.044715
    def epi(e, c):
        e.i(f"""s_lshr_b32 s{S_T0}, s{S_WAVE}, 1
        s_lshl_b32 s{S_T0}, s{S_T0}, 9
        s_add_u32 s{S_T0}, s{S_T0}, {ST}
        v_and_b32 v1, 15, v0
        v_lshl_add_u32 v1, v1, 3, s{S_T0}""")
        for i in range(4):
            e.i(f"ds_read_b64 v[{16+2*i}:{17+2*i}], v1 offset:{i*128}")
        e.i(f"""s_and_b32 s{S_T0}, s{S_WAVE}, 1
        v_lshrrev_b32 v2, 4, v0
        v_lshlrev_b32 v2, 4, v2
        v_add_u32 v2, {CS}, v2
        s_lshl_b32 s{S_T1}, s{S_T0}, 9
        v_add_u32 v3, s{S_T1}, v2
        s_lshl_b32 s{S_T1}, s{S_T0}, 6
        s_add_u32 s{S_T1}, s{S_T1}, 384
        v_add_u32 v4, s{S_T1}, v2""")
        for j in range(7):
            va, o = (3, j*64) if j < 6 else (4, 0)
            e.i(f"ds_read_b128 v[{32+8*j}:{35+8*j}], v{va} offset:{o}\nds_read_b128 v[{36+8*j}:{39+8*j}], v{va} offset:{B1-CS+o}")
        e.i(f"""s_lshl_b32 s{S_T1}, s{S_MB}, 3
        s_and_b32 s{S_T2}, s{S_WAVE}, 2
        s_lshl_b32 s{S_T2}, s{S_T2}, 1
        s_add_u32 s{S_T1}, s{S_T1}, s{S_T2}
        s_mul_i32 s{S_T1}, s{S_T1}, 112
        s_mul_i32 s{S_T2}, s{S_NB}, 7
        s_add_u32 s{S_T1}, s{S_T1}, s{S_T2}
        s_lshl_b32 s{S_T1}, s{S_T1}, 10
        s_lshl_b32 s{S_T2}, s{S_T0}, 12
        s_add_u32 s{S_T2}, s{S_T2}, s{S_T1}
        v_lshl_add_u32 v5, v0, 4, s{S_T2}
        s_lshl_b32 s{S_T2}, s{S_T0}, 3
        s_add_u32 s{S_T2}, s{S_T2}, s{S_T1}
        s_add_u32 s{S_T2}, s{S_T2}, 3072
        v_lshl_add_u32 v6, v0, 4, s{S_T2}
        s_mov_b32 s50, {f2u(C1)}
        s_mov_b32 s51, {f2u(C1)}
        s_mov_b32 s52, {f2u(C2)}
        s_mov_b32 s53, {f2u(C2)}
        s_waitcnt lgkmcnt(0)""")
        def gelu4(a, cs, b1, st, t):
            for h in range(2):
                x = a + 2*h
                e.i(f"""v_pk_fma_f32 v[96:97], v[{cs+2*h}:{cs+2*h+1}], v[{st}:{st+1}], v[{b1+2*h}:{b1+2*h+1}] op_sel:[0,1,0] op_sel_hi:[1,1,1]
                v_pk_fma_f32 v[{x}:{x+1}], v[{x}:{x+1}], v[{st}:{st+1}], v[96:97] op_sel_hi:[1,0,1]
                v_pk_mul_f32 v[98:99], v[{x}:{x+1}], v[{x}:{x+1}]
                v_pk_fma_f32 v[98:99], v[98:99], s[52:53], v[112:113]
                v_pk_mul_f32 v[98:99], v[98:99], v[{x}:{x+1}]
                v_exp_f32 v100, v98
                v_exp_f32 v101, v99
                s_nop 0
                v_pk_add_f32 v[100:101], v[100:101], 1.0 op_sel_hi:[1,0]
                v_rcp_f32 v100, v100
                v_rcp_f32 v101, v101
                s_nop 0
                v_pk_mul_f32 v[{x}:{x+1}], v[{x}:{x+1}], v[100:101]
                v_cvt_pk_bf16_f32 v{t+h}, v{x}, v{x+1}""")
        e.i("v_mov_b32 v112, s50\nv_mov_b32 v113, s50")
        k = 0
        for jp in range(3):
            for i in range(4):
                t = 116 + 4*(k % 2); k += 1
                for jj in range(2):
                    j = 2*jp + jj
                    gelu4(acc(c,i,j), 32+8*j, 36+8*j, 16+2*i, t+2*jj)
                e.i(f"s_mov_b32 s{S_T1}, {i*112*1024 + jp*1024}\nbuffer_store_dwordx4 v[{t}:{t+3}], v5, s[{S_O}:{S_O+3}], s{S_T1} offen@SC@")
        for i in range(4):
            t = 116 + 4*(k % 2); k += 1
            gelu4(acc(c,i,6), 32+8*6, 36+8*6, 16+2*i, t)
            e.i(f"s_mov_b32 s{S_T1}, {i*112*1024}\nbuffer_store_dwordx2 v[{t}:{t+1}], v6, s[{S_O}:{S_O+3}], s{S_T1} offen@SC@")
    def epi_wrap(e, c):
        e.i("s_nop 7")
        epi(e, c)
    return gemm_kernel(e, c, [(S_M, KA_WS, WS_H, 4*MB), (S_W, KA_W1, 0, 1024*3584*2), (S_O, KA_WS, WS_H1, SZ_H1),
                              (S_A, KA_WS, WS_STAT, 256*1024), (S_B, KA_WS, WS_CS1, 16*3584*4), (S_B1, KA_B1, 0, 7168)], epi_wrap, stamps, 4)

def gen_w2(e, name, stamps=False):
    c = Cfg(name=name, NB=2, KT=2, S=5, NL=2, unroll=2, rrate=2, K=3584, wstride=2048, korder='perm',
            VACC=128, VF=32, VA=8, e_mul=1, s_nb=None, swap=lambda j: False, xm=4, xn=8)
    ring = gemm_lds(c)[2]*c.S
    X0 = ring
    c.lds_total = X0 + 16384
    c.wcol_base = lambda e, s: e.i(f"s_lshl_b32 s{s}, s{S_NB}, 7")
    c.wcol_lane = lambda e, v, t: e.i(f"v_lshlrev_b32 v{v}, 6, v{v}")
    VH, VB = 96, 112
    def cpre(e):
        e.i(f"""s_lshl_b32 s{S_T0}, s{S_MB}, 3
        s_and_b32 s{S_T1}, s{S_WAVE}, 2
        s_lshl_b32 s{S_T1}, s{S_T1}, 1
        s_add_u32 s{S_T0}, s{S_T0}, s{S_T1}
        s_lshl_b32 s{S_T0}, s{S_T0}, 5
        s_lshl_b32 s{S_T1}, s{S_NB}, 1
        s_add_u32 s{S_T0}, s{S_T0}, s{S_T1}
        s_and_b32 s{S_T1}, s{S_WAVE}, 1
        s_add_u32 s{S_T0}, s{S_T0}, s{S_T1}
        s_lshl_b32 s{S_T0}, s{S_T0}, 10
        v_lshl_add_u32 v18, v0, 4, s{S_T0}""")
        for i in range(4):
            e.i(f"s_mov_b32 s{S_T1}, {i*32768}\nbuffer_load_dwordx4 v[{VH+4*i}:{VH+4*i+3}], v18, s[{S_A}:{S_A+3}], s{S_T1} offen")
        e.i(f"""s_lshl_b32 s{S_T0}, s{S_NB}, 7
        s_and_b32 s{S_T1}, s{S_WAVE}, 1
        s_lshl_b32 s{S_T1}, s{S_T1}, 6
        s_add_u32 s{S_T0}, s{S_T0}, s{S_T1}
        v_lshrrev_b32 v19, 4, v0
        v_lshl_add_u32 v19, v19, 3, s{S_T0}
        buffer_load_dwordx2 v[{VB}:{VB+1}], v19, s[{S_B}:{S_B+3}], 0 offen
        buffer_load_dwordx2 v[{VB+2}:{VB+3}], v19, s[{S_B}:{S_B+3}], 0 offen offset:32""")
    c.consumer_pre = cpre
    def epi(e, c):
        rm_lane_addr(e, 16, 17, X0)
        e.i("s_waitcnt vmcnt(0)")
        for q in range(4):
            e.i(f"v_lshlrev_b32 v{116+2*q}, 16, v{VB+q}\nv_and_b32 v{117+2*q}, 0xffff0000, v{VB+q}")
        for i in range(4):
            a, b = acc(c,i,0), acc(c,i,1)
            x = VH+4*i
            e.i(f"""v_lshlrev_b32 v20, 16, v{x}
            v_and_b32 v21, 0xffff0000, v{x}
            v_lshlrev_b32 v22, 16, v{x+1}
            v_and_b32 v23, 0xffff0000, v{x+1}
            v_lshlrev_b32 v24, 16, v{x+2}
            v_and_b32 v25, 0xffff0000, v{x+2}
            v_lshlrev_b32 v26, 16, v{x+3}
            v_and_b32 v27, 0xffff0000, v{x+3}
            v_pk_add_f32 v[{a}:{a+1}], v[{a}:{a+1}], v[116:117]
            v_pk_add_f32 v[{a+2}:{a+3}], v[{a+2}:{a+3}], v[118:119]
            v_pk_add_f32 v[{b}:{b+1}], v[{b}:{b+1}], v[120:121]
            v_pk_add_f32 v[{b+2}:{b+3}], v[{b+2}:{b+3}], v[122:123]
            v_pk_add_f32 v[{a}:{a+1}], v[{a}:{a+1}], v[20:21]
            v_pk_add_f32 v[{a+2}:{a+3}], v[{a+2}:{a+3}], v[22:23]
            v_pk_add_f32 v[{b}:{b+1}], v[{b}:{b+1}], v[24:25]
            v_pk_add_f32 v[{b+2}:{b+3}], v[{b+2}:{b+3}], v[26:27]""")
            t = 64 + 4*i
            e.i(f"""v_cvt_pk_bf16_f32 v{t}, v{a}, v{a+1}
            v_cvt_pk_bf16_f32 v{t+1}, v{a+2}, v{a+3}
            v_cvt_pk_bf16_f32 v{t+2}, v{b}, v{b+1}
            v_cvt_pk_bf16_f32 v{t+3}, v{b+2}, v{b+3}
            ds_write_b64 v16, v[{t}:{t+1}] offset:{i*2048}
            ds_write_b64 v17, v[{t+2}:{t+3}] offset:{i*2048}""")
        e.i("s_waitcnt lgkmcnt(0)\ns_barrier")
        e.i(f"""s_lshl_b32 s{S_T0}, s{S_WAVE}, 12
        s_add_u32 s{S_T0}, s{S_T0}, {X0}
        v_lshl_add_u32 v1, v0, 4, s{S_T0}""")
        for q in range(4):
            e.i(f"ds_read_b128 v[{32+4*q}:{35+4*q}], v1 offset:{q*1024}")
        e.i(f"""s_lshl_b32 s{S_T0}, s{S_MB}, 7
        s_lshl_b32 s{S_T1}, s{S_WAVE}, 5
        s_add_u32 s{S_T0}, s{S_T0}, s{S_T1}
        s_lshl_b32 s{S_T0}, s{S_T0}, 11
        s_lshl_b32 s{S_T1}, s{S_NB}, 7
        s_add_u32 s{S_T0}, s{S_T0}, s{S_T1}
        v_lshrrev_b32 v2, 3, v0
        v_lshl_add_u32 v2, v2, 11, s{S_T0}
        v_lshrrev_b32 v3, 4, v0
        v_and_b32 v4, 7, v0
        v_xor_b32 v3, v3, v4
        v_lshl_add_u32 v5, v3, 4, v2
        v_xor_b32 v3, 4, v3
        v_lshl_add_u32 v6, v3, 4, v2""")
        for q in range(4):
            e.i(f"s_waitcnt lgkmcnt({3-q})\ns_mov_b32 s{S_T1}, {q*16384}\nbuffer_store_dwordx4 v[{32+4*q}:{35+4*q}], v{5+(q&1)}, s[{S_O}:{S_O+3}], s{S_T1} offen@SC@")
    def epi_wrap(e, c):
        e.i("s_nop 7")
        epi(e, c)
    return gemm_kernel(e, c, [(S_M, KA_WS, WS_H1, SZ_H1), (S_W, KA_W2, 0, 3584*2048), (S_O, KA_OUT, 0, 4*MB),
                              (S_A, KA_WS, WS_H, 4*MB), (S_B, KA_B2, 0, 2048)], epi_wrap, stamps, 5)
```

```python
from common import *
def gen_ln1(e, name, stamps=False):
    st = Stamps(stamps, 0)
    kernel_head(e, name)
    e.i(f"s_cmp_ge_u32 s2, 256\ns_cbranch_scc1 {name}_end")
    fx = load_srd(e, 8, KA_X, 0, 4*MB)
    fo = load_srd(e, 12, KA_WS, WS_XN, 4*MB)
    fw = load_srd(e, 16, KA_W1, 0, 1024*3584*2)
    fc = load_srd(e, 20, KA_WS, WS_CS1, 16*3584*4)
    fq = load_srd(e, 28, KA_WQKV, 0, 1024*3072*2)
    st.init(e); st.stamp(e)
    e.i("""v_and_b32 v1, 63, v0
    v_lshrrev_b32 v2, 6, v0
    v_lshrrev_b32 v3, 5, v1
    v_and_b32 v4, 31, v1
    v_lshl_add_u32 v5, v2, 1, v3
    s_lshl_b32 s3, s2, 3
    v_add_u32 v6, s3, v5
    v_lshlrev_b32 v6, 11, v6
    v_lshl_add_u32 v6, v4, 4, v6
    v_readfirstlane_b32 s24, v2""")
    M, sh = magic_div(28, 255)
    e.i(f"""v_mul_u32_u24 v7, {M}, v0
    v_lshrrev_b32 v7, {sh}, v7
    v_mul_u32_u24 v8, 28, v7
    v_sub_u32 v8, v0, v8
    s_lshr_b32 s4, s2, 4
    s_and_b32 s5, s2, 15
    s_lshl_b32 s6, s4, 6
    v_lshl_add_u32 v9, v7, 3, s6
    s_mov_b32 s7, 7168
    v_mul_lo_u32 v9, v9, s7
    s_mul_i32 s6, s5, 448
    v_lshl_add_u32 v9, v8, 4, v9
    v_add_u32 v9, s6, v9
    s_waitcnt lgkmcnt(0)""")
    fx(); fo(); fw(); fc(); fq()
    for j in range(4):
        e.i(f"buffer_load_dwordx4 v[{16+4*j}:{19+4*j}], v6, s[8:11], 0 offen offset:{512*j}")
    e.i("""s_lshr_b32 s4, s2, 3
    s_mul_i32 s4, s4, 384
    v_add_u32 v56, s4, v0
    v_mul_u32_u24 v57, 43691, v56
    v_lshrrev_b32 v57, 19, v57
    v_mul_u32_u24 v58, 12, v57
    v_sub_u32 v58, v56, v58
    v_lshrrev_b32 v59, 2, v58
    v_and_b32 v58, 3, v58
    v_mul_u32_u24 v57, 6144, v57
    v_lshl_add_u32 v57, v59, 11, v57
    v_lshl_add_u32 v57, v58, 7, v57
    s_and_b32 s4, s2, 7
    s_lshr_b32 s4, s4, 1
    s_lshl_b32 s4, s4, 9
    v_add_u32 v57, s4, v57
    buffer_load_dword v60, v57, s[28:31], 0 offen""")
    e.i("""v_add_u32 v56, 256, v56
    v_mul_u32_u24 v58, 43691, v56
    v_lshrrev_b32 v58, 19, v58
    v_mul_u32_u24 v59, 12, v58
    v_sub_u32 v59, v56, v59
    v_lshrrev_b32 v61, 2, v59
    v_and_b32 v59, 3, v59
    v_mul_u32_u24 v58, 6144, v58
    v_lshl_add_u32 v58, v61, 11, v58
    v_lshl_add_u32 v58, v59, 7, v58
    v_add_u32 v58, s4, v58
    v_cmp_gt_u32 vcc, 128, v0
    s_nop 1
    v_cndmask_b32 v58, v57, v58, vcc
    buffer_load_dword v61, v58, s[28:31], 0 offen""")
    e.i("v_cmp_gt_u32 vcc, 224, v0\ns_and_saveexec_b64 s[26:27], vcc")
    e.i(f"s_cbranch_execz {name}_nw")
    for i in range(8):
        e.i(f"buffer_load_dwordx4 v[{64+4*i}:{67+4*i}], v9, s[16:19], 0 offen\nv_add_u32 v9, 7168, v9")
    e.label(f"{name}_nw")
    e.i("s_mov_b64 exec, s[26:27]")
    e.i("s_waitcnt vmcnt(10)")
    for r in range(16):
        e.i(f"v_lshlrev_b32 v{96+2*r}, 16, v{16+r}\nv_and_b32 v{97+2*r}, 0xffff0000, v{16+r}")
    def allreduce32(v, t):
        e.i(f"""s_nop 1
        v_add_f32_dpp v{v}, v{v}, v{v} quad_perm:[1,0,3,2] row_mask:0xf bank_mask:0xf
        s_nop 1
        v_add_f32_dpp v{v}, v{v}, v{v} quad_perm:[2,3,0,1] row_mask:0xf bank_mask:0xf
        s_nop 1
        v_add_f32_dpp v{v}, v{v}, v{v} row_half_mirror row_mask:0xf bank_mask:0xf
        s_nop 1
        v_add_f32_dpp v{v}, v{v}, v{v} row_mirror row_mask:0xf bank_mask:0xf
        s_nop 1
        v_mov_b32 v{t}, v{v}
        s_nop 1
        v_permlane16_swap_b32 v{t}, v{v}
        s_nop 1
        v_add_f32 v{v}, v{t}, v{v}""")
    e.i("v_pk_add_f32 v[10:11], v[96:97], v[98:99]")
    for r in range(2, 16):
        e.i(f"v_pk_add_f32 v[10:11], v[10:11], v[{96+2*r}:{97+2*r}]")
    e.i("v_add_f32 v10, v10, v11")
    allreduce32(10, 11)
    e.i("v_mul_f32 v10, 0x3a800000, v10")
    e.i("v_mov_b32 v11, v10")
    for r in range(16):
        e.i(f"v_pk_add_f32 v[{96+2*r}:{97+2*r}], v[{96+2*r}:{97+2*r}], v[10:11] neg_lo:[0,1] neg_hi:[0,1]")
    e.i("v_pk_mul_f32 v[12:13], v[96:97], v[96:97]")
    for r in range(1, 16):
        e.i(f"v_pk_fma_f32 v[12:13], v[{96+2*r}:{97+2*r}], v[{96+2*r}:{97+2*r}], v[12:13]")
    e.i("v_add_f32 v12, v12, v13")
    allreduce32(12, 13)
    e.i("""v_mov_b32 v13, 0x3727c5ac
    v_fmac_f32 v13, 0x3a800000, v12
    v_rsq_f32 v12, v13
    s_nop 0
    v_mov_b32 v13, v12""")
    for r in range(16):
        e.i(f"v_pk_mul_f32 v[{96+2*r}:{97+2*r}], v[{96+2*r}:{97+2*r}], v[12:13]")
    for r in range(16):
        e.i(f"v_cvt_pk_bf16_f32 v{16+r}, v{96+2*r}, v{97+2*r}")
    e.i("""s_lshr_b32 s4, s2, 1
    s_lshl_b32 s4, s4, 15
    s_and_b32 s5, s2, 1
    s_lshl_b32 s5, s5, 7
    s_add_u32 s4, s4, s5
    v_lshl_add_u32 v14, v5, 4, s4
    v_lshrrev_b32 v15, 2, v4
    v_lshl_add_u32 v14, v15, 10, v14
    v_and_b32 v15, 3, v4
    v_lshl_add_u32 v14, v15, 8, v14""")
    for j in range(4):
        e.i(f"buffer_store_dwordx4 v[{16+4*j}:{19+4*j}], v14, s[12:15], 0 offen@SC@\nv_add_u32 v14, 8192, v14")
    e.i("s_waitcnt vmcnt(4)")
    for q in range(4):
        e.i(f"v_lshlrev_b32 v{96+2*q}, 16, v{64+q}\nv_and_b32 v{97+2*q}, 0xffff0000, v{64+q}")
    for i in range(1, 8):
        for q in range(4):
            e.i(f"v_lshlrev_b32 v104, 16, v{64+4*i+q}\nv_and_b32 v105, 0xffff0000, v{64+4*i+q}\nv_pk_add_f32 v[{96+2*q}:{97+2*q}], v[{96+2*q}:{97+2*q}], v[104:105]")
    e.i("""v_mul_u32_u24 v10, 896, v7
    v_lshl_add_u32 v10, v8, 5, v10
    v_cmp_gt_u32 vcc, 224, v0
    s_and_saveexec_b64 s[26:27], vcc""")
    e.i(f"s_cbranch_execz {name}_nl")
    e.i("ds_write_b128 v10, v[96:99]\nds_write_b128 v10, v[100:103] offset:16")
    e.label(f"{name}_nl")
    e.i("s_mov_b64 exec, s[26:27]\ns_waitcnt lgkmcnt(0)\ns_barrier")
    e.i("""v_lshlrev_b32 v10, 2, v0
    v_cmp_gt_u32 vcc, 224, v0
    s_and_saveexec_b64 s[26:27], vcc""")
    e.i(f"s_cbranch_execz {name}_fin")
    for i in range(8):
        e.i(f"ds_read_b32 v{96+i}, v10 offset:{896*i}")
    e.i("s_waitcnt lgkmcnt(0)")
    for i in range(1, 8):
        e.i(f"v_add_f32 v96, v96, v{96+i}")
    e.i("""s_lshr_b32 s4, s2, 4
    s_mul_i32 s4, s4, 14336
    s_and_b32 s5, s2, 15
    s_mul_i32 s5, s5, 896
    s_add_u32 s4, s4, s5
    v_add_u32 v10, s4, v10
    buffer_store_dword v96, v10, s[20:23], 0 offen@SC@""")
    e.label(f"{name}_fin")
    e.i("s_mov_b64 exec, s[26:27]")
    e.i("s_waitcnt vmcnt(0)")
    st.stamp(e); st.flush(e, 24)
    e.label(f"{name}_end")
    e.i("s_endpgm")
    kernel_desc(e, name, 128)
    return dict(name=name, grid=256, block=256, lds=8*896, vgpr=128)
```

```python
class E:
    def __init__(self):
        self.l = []
        self.uid = 0
    def __call__(self, s=""):
        for x in s.split("\n"):
            self.l.append(x)
    def c(self, s): self.l.append("  ; " + s)
    def i(self, s):
        for x in s.strip("\n").split("\n"):
            x = x.strip()
            if x: self.l.append("  " + x)
    def label(self, s): self.l.append(s + ":")
    def new(self, p="L"):
        self.uid += 1
        return f"{p}_{self.uid}"
    sc = ""
    def text(self): return ("\n".join(self.l) + "\n").replace("@SC@", E.sc)

def vr(a, n=1): return f"v{a}" if n == 1 else f"v[{a}:{a+n-1}]"
def sr(a, n=1): return f"s{a}" if n == 1 else f"s[{a}:{a+n-1}]"

def kernel_head(e, name):
    e(f".globl {name}\n.p2align 8\n.type {name},@function\n{name}:")

def kernel_desc(e, name, vgpr, sgpr=102, accum=None):
    if accum is None: accum = (vgpr + 3)//4*4
    e(f""".section .rodata,"a"
.p2align 6
.amdhsa_kernel {name}
  .amdhsa_next_free_vgpr {vgpr}
  .amdhsa_next_free_sgpr {sgpr}
  .amdhsa_accum_offset {accum}
  .amdhsa_group_segment_fixed_size 0
  .amdhsa_kernarg_size 88
  .amdhsa_user_sgpr_count 2
  .amdhsa_user_sgpr_kernarg_segment_ptr 1
  .amdhsa_system_sgpr_workgroup_id_x 1
.end_amdhsa_kernel
.text""")

def load_srd(e, s, karg_off, add, size):
    e.i(f"s_load_dwordx2 s[{s}:{s+1}], s[0:1], {karg_off}")
    def fix():
        if add:
            e.i(f"s_add_u32 s{s}, s{s}, {add}\ns_addc_u32 s{s+1}, s{s+1}, 0")
        e.i(f"s_mov_b32 s{s+2}, {size}\ns_mov_b32 s{s+3}, 0x00020000")
    return fix

def magic_div(d, maxv):
    for sh in range(4, 24):
        M = -(-(1 << sh)//d)
        if M < (1 << 24) and M*maxv < (1 << 32) and all((q*M) >> sh == q//d for q in range(maxv+1)):
            return M, sh
    raise RuntimeError
```

```python
import sys, os
sys.path.insert(0, os.path.dirname(os.path.abspath(__file__)))
from common import *
from k_ln1 import gen_ln1
from k_gemms import gen_qkv, gen_wo, gen_w1, gen_w2
from k_attn import gen_attn
from k_attn2 import gen_attn2
from k_attn3 import gen_attn3

def build(stamps=False):
    E.sc = " sc1" if "--sc1" in sys.argv else (" sc0 sc1" if "--sc01" in sys.argv else (" nt" if "--nt" in sys.argv else ""))
    e = E()
    ks = []
    body = E()
    names = ["ln1", "qkv", "attn", "wo", "w1", "w2"]
    gens = [gen_ln1, gen_qkv, (lambda e, n, s: gen_attn3(e, n, s, {'spread':1,'prio':1})), gen_wo, gen_w1, gen_w2]
    for n, g in zip(names, gens):
        ks.append(g(body, f"{n}_kernel", stamps))
    ref = open("cdna_kernels/" + PREFIX + ".s.ref").read().split("\n")
    hdr = [l for l in ref if l.startswith(";") and "@launch" not in l and "Override launch" not in l and "grid=ceil" not in l]
    out = hdr[:]
    for k in ks:
        out.append(f"; @launch kernel={k['name']} grid=({k['grid']},1,1) block=({k['block']},1,1) lds={k['lds']}")
    out.append('.amdgcn_target "amdgcn-amd-amdhsa--gfx950"')
    out.append(".text")
    return "\n".join(out) + "\n" + body.text(), ks

if __name__ == "__main__":
    stamps = "--stamps" in sys.argv
    outp = [a for a in sys.argv[1:] if not a.startswith("--")]
    txt, ks = build(stamps)
    path = outp[0] if outp else "cdna_kernels/" + PREFIX + ".s"
    open(path, "w").write(txt)
    print(path, len(txt), "bytes")
    for k in ks: print(k)
    if "--co" in sys.argv:
        sys.path.insert(0, "dev")
        from asmlib import metadata, assemble
        co_s = path.replace(".s", "_dev.s")
        open(co_s, "w").write(txt + metadata([(k['name'], k['vgpr'], 102, k['block']) for k in ks]))
        assemble(co_s, path.replace(".s", ".co"))
        import json
        json.dump(ks, open(path.replace(".s", ".json"), "w"))
```

```python
from kg import *

class GemmCfg:
    def __init__(s, **k): s.__dict__.update(k)

S_M, S_W, S_O = 8, 12, 16
S_WAVE, S_MB, S_NB, S_SLOT, S_CNT, S_MT, S_WT, S_T0, S_T1, S_T2 = 24, 25, 26, 27, 28, 29, 30, 31, 32, 33

def gemm_lds(c):
    mbytes = 4*c.KT*1024
    wbytes = c.KT*c.NB*1024
    return mbytes, wbytes, mbytes + wbytes

def emit_loader(e, c):
    NB, KT, S, NL = c.NB, c.KT, c.S, c.NL
    NT = c.K//(16*KT)
    mbytes, wbytes, stage = gemm_lds(c)
    MPW = 4//NL
    IW = KT*NB//NL
    assert KT*NB % NL == 0 and KT <= 4
    IPW = MPW*KT + IW
    NKS = c.K//16
    n = c.name
    e.c("---- loader")
    e.i(f"s_sub_u32 s{S_T0}, s{S_WAVE}, 4")
    e.i(f"""s_lshl_b32 s{S_T1}, s{S_MB}, 2
    s_mul_i32 s{S_T2}, s{S_T0}, {MPW}
    s_add_u32 s{S_T1}, s{S_T1}, s{S_T2}
    s_mul_i32 s{S_T1}, s{S_T1}, {NKS*1024}
    v_lshl_add_u32 v1, v0, 4, s{S_T1}""")
    for i in range(1, MPW):
        e.i(f"v_add_u32 v{1+i}, {i*NKS*1024}, v1")
    VW = 1 + MPW
    M, sh = magic_div(NB, 4*KT*NB)
    e.i(f"""v_lshrrev_b32 v40, 4, v0
    s_mul_i32 s{S_T1}, s{S_T0}, {4*IW}
    v_add_u32 v40, s{S_T1}, v40
    v_bfe_u32 v41, v0, 2, 2
    v_and_b32 v42, 3, v0
    v_lshlrev_b32 v42, 4, v42
    s_mov_b32 s{S_T2}, {c.wstride}""")
    c.wcol_base(e, S_T1)
    e.i(f"v_add_u32 v42, s{S_T1}, v42")
    for i in range(IW):
        e.i(f"""v_add_u32 v43, {4*i}, v40
        v_mul_u32_u24 v44, {M}, v43
        v_lshrrev_b32 v44, {sh}, v44
        v_mul_u32_u24 v45, {NB}, v44
        v_sub_u32 v45, v43, v45
        v_lshl_add_u32 v44, v44, 2, v41
        v_mul_lo_u32 v44, v44, s{S_T2}""")
        c.wcol_lane(e, 45)
        e.i(f"v_add3_u32 v{VW+i}, v44, v45, v42")
    e.i(f"""s_mul_i32 s34, s{S_T0}, {MPW*KT*1024}
    s_mul_i32 s35, s{S_T0}, {IW*1024}
    s_add_u32 s35, s35, {mbytes}
    s_mov_b32 s{S_SLOT}, 0
    s_mov_b32 s{S_MT}, 0
    s_mov_b32 s{S_WT}, 0""")
    def issue():
        e.i(f"s_add_u32 m0, s{S_SLOT}, s34")
        for i in range(MPW):
            if i: e.i(f"s_add_u32 m0, m0, {KT*1024}")
            e.i("s_nop 0")
            for j in range(KT):
                e.i(f"buffer_load_dwordx4 v{1+i}, s[{S_M}:{S_M+3}], s{S_MT} offen offset:{j*1024} lds")
        e.i(f"s_add_u32 m0, s{S_SLOT}, s35")
        for i in range(IW):
            if i: e.i(f"s_add_u32 m0, m0, 1024")
            e.i("s_nop 0")
            e.i(f"buffer_load_dwordx4 v{VW+i}, s[{S_W}:{S_W+3}], s{S_WT} offen lds")
        e.i(f"""s_add_u32 s{S_MT}, s{S_MT}, {KT*1024}
        s_add_u32 s{S_WT}, s{S_WT}, {16*KT*c.wstride}
        s_add_u32 s{S_SLOT}, s{S_SLOT}, {stage}
        s_cmp_eq_u32 s{S_SLOT}, {S*stage}
        s_cselect_b32 s{S_SLOT}, 0, s{S_SLOT}""")
    e.i(f"s_mov_b32 s{S_CNT}, {S-2}")
    lp = f"{n}_lpro"
    e.label(lp)
    issue()
    e.i(f"""s_sub_u32 s{S_CNT}, s{S_CNT}, 1
    s_cmp_lg_u32 s{S_CNT}, 0
    s_cbranch_scc1 {lp}
    s_mov_b32 s{S_CNT}, {NT-(S-2)}""")
    if getattr(c, 'nobar', False):
        e.i("s_waitcnt vmcnt(0)\ns_barrier")
        return
    lm = f"{n}_lmain"
    e.label(lm)
    e.i(f"s_waitcnt vmcnt({(S-3)*IPW})\ns_barrier")
    issue()
    e.i(f"""s_sub_u32 s{S_CNT}, s{S_CNT}, 1
    s_cmp_lg_u32 s{S_CNT}, 0
    s_cbranch_scc1 {lm}""")
    for i in range(S-2):
        e.i(f"s_waitcnt vmcnt({(S-3-i)*IPW})\ns_barrier")
    assert (S-3)*IPW <= 63 and (S-2)*IPW <= 63

def emit_consumer_main(e, c):
    NB, KT, S, G = c.NB, c.KT, c.S, c.G
    NT = c.K//(16*KT)
    mbytes, wbytes, stage = gemm_lds(c)
    n = c.name
    ACC = c.VACC
    SETSZ = G*(4 + 4*NB)
    def mreg(p, g): return c.VF + p*SETSZ + g*(4+4*NB)
    def wreg(p, g, b): return mreg(p, g) + 4 + 4*b
    VM, VW, VMC, VWC = c.VA, c.VA+1, c.VA+2, c.VA+3
    e.c("---- consumer setup")
    e.i(f"""s_mul_i32 s{S_T0}, s{S_WAVE}, {KT*1024}
    v_lshl_add_u32 v{VM}, v0, 4, s{S_T0}
    v_lshrrev_b32 v1, 5, v0
    v_mul_u32_u24 v{VW}, {2*NB*256}, v1
    v_bfe_u32 v1, v0, 2, 2
    v_lshl_add_u32 v{VW}, v1, 6, v{VW}
    v_bfe_u32 v1, v0, 4, 1
    v_lshl_add_u32 v{VW}, v1, 5, v{VW}
    v_and_b32 v1, 1, v0
    v_lshl_add_u32 v{VW}, v1, 4, v{VW}
    v_bfe_u32 v1, v0, 1, 1
    v_lshl_add_u32 v{VW}, v1, 3, v{VW}
    v_add_u32 v{VW}, {mbytes}, v{VW}""")
    z = c.VF
    e.i("\n".join(f"v_mov_b32 v{z+i}, 0" for i in range(4)))
    e.i("s_nop 1")
    for b in range(NB):
        e.i(f"v_mfma_f32_32x32x16_bf16 v[{ACC+16*b}:{ACC+16*b+15}], v[{z}:{z+3}], v[{z}:{z+3}], 0")
    e.i(f"s_mov_b32 s{S_SLOT}, 0\ns_mov_b32 s{S_CNT}, {NT}")
    NSTEP = KT//G
    assert KT % G == 0 and NSTEP % 2 == 0
    R = G*(2*NB+1)
    def reads(p, j):
        slots = []
        for g in range(G):
            ks = j*G + g
            for b in range(NB):
                r = []
                if b == 0:
                    r.append(f"ds_read_b128 v[{mreg(p,g)}:{mreg(p,g)+3}], v{VMC} offset:{ks*1024}")
                w = wreg(p, g, b)
                o0 = (4*ks*NB + b)*256
                r.append(f"ds_read_b64_tr_b16 v[{w}:{w+1}], v{VWC} offset:{o0}")
                r.append(f"ds_read_b64_tr_b16 v[{w+2}:{w+3}], v{VWC} offset:{o0 + NB*256}")
                slots.append(r)
        return slots
    def mfma(p, g, b):
        a = ACC + 16*b
        w = wreg(p, g, b); m = mreg(p, g)
        if c.swap(b):
            return f"v_mfma_f32_32x32x16_bf16 v[{a}:{a+15}], v[{m}:{m+3}], v[{w}:{w+3}], v[{a}:{a+15}]"
        return f"v_mfma_f32_32x32x16_bf16 v[{a}:{a+15}], v[{w}:{w+3}], v[{m}:{m+3}], v[{a}:{a+15}]"
    def waits():
        cum = []; t = 0
        for g in range(G):
            for b in range(NB):
                t += 3 if b == 0 else 2
                cum.append(t)
        w = []
        for u in range(G*NB):
            after_prev = R - cum[u]
            now = cum[u-1] if u > 0 else 0
            w.append(after_prev + now)
        return w
    W = waits()
    assert max(W) <= 15, W
    def step(j, with_mfma=True, with_reads=True, tailwait=False):
        pr = j & 1
        pm = pr ^ 1
        rs = reads(pr, j) if with_reads else [[] for _ in range(G*NB)]
        cum = 0
        for u in range(G*NB):
            g, b = divmod(u, NB)
            if with_mfma:
                if with_reads: wv = W[u]
                else:
                    t = 0
                    for uu in range(u+1): t += 3 if uu % NB == 0 else 2
                    wv = R - t
                e.i(f"s_waitcnt lgkmcnt({wv})")
                e.i(mfma(pm, g, b))
            for r in rs[u]: e.i(r)
    def newslot():
        e.i(f"v_add_u32 v{VMC}, s{S_SLOT}, v{VM}\nv_add_u32 v{VWC}, s{S_SLOT}, v{VW}")
        e.i(f"""s_add_u32 s{S_SLOT}, s{S_SLOT}, {stage}
        s_cmp_eq_u32 s{S_SLOT}, {S*stage}
        s_cselect_b32 s{S_SLOT}, 0, s{S_SLOT}""")
    e.i("s_barrier")
    if getattr(c, 'stamp', None): e.i(c.stamp)
    newslot()
    step(0, with_mfma=False)
    e.i(f"s_branch {n}_c1")
    lp = f"{n}_cloop"
    e(".p2align 6")
    e.label(lp)
    if not getattr(c, 'nobar', False): e.i("s_barrier")
    newslot()
    step(0)
    e.label(f"{n}_c1")
    for j in range(1, NSTEP): step(j)
    e.i(f"""s_sub_u32 s{S_CNT}, s{S_CNT}, 1
    s_cmp_lg_u32 s{S_CNT}, 0
    s_cbranch_scc1 {lp}""")
    step(0, with_reads=False)
```

```python
class E:
    def __init__(self):
        self.l = []
        self.uid = 0
    def __call__(self, s=""):
        for x in s.split("\n"):
            self.l.append(x)
    def c(self, s): self.l.append("  ; " + s)
    def i(self, s):
        for x in s.strip("\n").split("\n"):
            x = x.strip()
            if x: self.l.append("  " + x)
    def label(self, s): self.l.append(s + ":")
    def new(self, p="L"):
        self.uid += 1
        return f"{p}_{self.uid}"
    def text(self): return "\n".join(self.l) + "\n"

def vr(a, n=1): return f"v{a}" if n == 1 else f"v[{a}:{a+n-1}]"
def sr(a, n=1): return f"s{a}" if n == 1 else f"s[{a}:{a+n-1}]"

def kernel_head(e, name):
    e(f".globl {name}\n.p2align 8\n.type {name},@function\n{name}:")

def kernel_desc(e, name, vgpr, sgpr=102, accum=None):
    if accum is None: accum = (vgpr + 3)//4*4
    e(f""".section .rodata,"a"
.p2align 6
.amdhsa_kernel {name}
  .amdhsa_next_free_vgpr {vgpr}
  .amdhsa_next_free_sgpr {sgpr}
  .amdhsa_accum_offset {accum}
  .amdhsa_group_segment_fixed_size 0
  .amdhsa_kernarg_size 88
  .amdhsa_user_sgpr_count 2
  .amdhsa_user_sgpr_kernarg_segment_ptr 1
  .amdhsa_system_sgpr_workgroup_id_x 1
.end_amdhsa_kernel
.text""")

def load_srd(e, s, karg_off, add, size):
    e.i(f"s_load_dwordx2 s[{s}:{s+1}], s[0:1], {karg_off}")
    def fix():
        if add:
            e.i(f"s_add_u32 s{s}, s{s}, {add}\ns_addc_u32 s{s+1}, s{s+1}, 0")
        e.i(f"s_mov_b32 s{s+2}, {size}\ns_mov_b32 s{s+3}, 0x00020000")
    return fix

def magic_div(d, maxv):
    for sh in range(4, 24):
        M = -(-(1 << sh)//d)
        if M < (1 << 24) and M*maxv < (1 << 32) and all((q*M) >> sh == q//d for q in range(maxv+1)):
            return M, sh
    raise RuntimeError
```

```python
from kg import *
import struct, math
KA_X, KA_WQKV, KA_WO, KA_BX, KA_W1, KA_B1, KA_W2, KA_B2, KA_OUT, KA_DBG, KA_WS = 0, 8, 16, 24, 32, 40, 48, 56, 64, 72, 80
MB = 1 << 20
WS_XN, WS_Q, WS_K, WS_V, WS_O, WS_H = 0, 4*MB, 8*MB, 12*MB, 16*MB, 20*MB
WS_H1 = 24*MB
WS_STAT = 40*MB
WS_CS1 = 41*MB
WS_FL = 42*MB
FLS = 128
FL_T = 16*32*FLS
SZ_FL = 4*FL_T
SZ_H1 = 2048*3584*2
PREFIX = "sequential_preLN__mha_block__dense_activation_gelu__prompt"
def f2u(x): return struct.unpack("<I", struct.pack("<f", x))[0]

S_WG, S_WAVE = 2, 3
S_FLP = 4
S_STAMP0 = 60

class Stamps:
    def __init__(self, on, kidx=0): self.on = on; self.k = kidx; self.n = 0; self.names = []
    def init(self, e):
        if self.on: e.i("s_load_dwordx2 s[56:57], s[0:1], %d" % KA_DBG)
    def stamp(self, e, name="", idx=None):
        if not self.on: return
        if idx is None:
            idx = self.n; self.n += 1; self.names.append(name)
        assert S_STAMP0 + 2*idx + 1 < 102
        e.i(f"s_memrealtime s[{S_STAMP0+2*idx}:{S_STAMP0+2*idx+1}]")
    def flush(self, e, swave, nmax=None):
        if not self.on: return
        e.i("s_waitcnt lgkmcnt(0)")
        e.i(f"""s_mov_b32 s58, 0x1000000
        s_mov_b32 s59, 0x00020000
        s_lshl_b32 s54, s2, 3
        s_add_u32 s54, s54, s{swave}
        s_lshl_b32 s54, s54, 7
        s_add_u32 s54, s54, {self.k*256*8*128}
        v_mov_b32 v2, s54""")
        for i in range(nmax or self.n):
            e.i(f"v_mov_b32 v{4+(i&3)}, s{S_STAMP0+2*i}\nbuffer_store_dword v{4+(i&3)}, v2, s[56:59], 0 offen offset:{4*i}")

def emit_signal(e, T, sgroup, sidx, tmp):
    e.i(f"""s_lshl_b32 s{tmp}, s{sgroup}, 5
    s_add_u32 s{tmp}, s{tmp}, s{sidx}
    s_mul_i32 s{tmp}, s{tmp}, {FLS}
    s_add_u32 s{tmp}, s{tmp}, {T*FL_T}
    v_mov_b32 v2, s{tmp}
    v_mov_b32 v3, 1
    s_mov_b64 s[50:51], exec
    s_mov_b64 exec, 1
    buffer_store_dword v3, v2, s[{S_FLP}:{S_FLP+3}], 0 offen sc1
    s_mov_b64 exec, s[50:51]""")

def emit_poll(e, T, sgroup, nprod, tmp, label):
    e.i(f"""s_lshl_b32 s{tmp}, s{sgroup}, 5
    s_mul_i32 s{tmp}, s{tmp}, {FLS}
    s_add_u32 s{tmp}, s{tmp}, {T*FL_T}
    v_min_u32 v2, {nprod-1}, v0
    v_mul_u32_u24 v2, {FLS}, v2
    v_add_u32 v2, s{tmp}, v2
    s_mov_b32 s{tmp}, 0x8000""")
    e.label(label)
    e.i(f"""buffer_load_dword v3, v2, s[{S_FLP}:{S_FLP+3}], 0 offen sc1
    s_sub_u32 s{tmp}, s{tmp}, 1
    s_cmp_eq_u32 s{tmp}, 0
    s_cbranch_scc1 {label}_x
    s_waitcnt vmcnt(0)
    v_cmp_ne_u32 vcc, 1, v3
    s_nop 4
    s_cbranch_vccnz {label}""")
    e.label(label + "_x")
    e.i("s_waitcnt vmcnt(0)")
```

```python
from common import *

class Cfg:
    def __init__(s, **k): s.__dict__.update(k)

S_M, S_W = 8, 12
S_MB, S_NB, S_SLOT, S_CNT, S_MT, S_WT, S_T0, S_T1, S_T2, S_T3, S_T4 = 37, 38, 39, 40, 41, 42, 43, 44, 45, 46, 47
NL = 4

def gemm_lds(c):
    mbytes = 8*c.KT*1024
    wbytes = c.KT*2*c.NB*1024
    return mbytes, wbytes, mbytes + wbytes

def emit_map(e, xm, xn):
    gm = 16//xm
    e.i(f"""s_and_b32 s{S_T0}, s2, 7
    s_lshr_b32 s{S_T1}, s2, 3
    s_and_b32 s{S_MB}, s{S_T0}, {gm-1}
    s_mul_i32 s{S_MB}, s{S_MB}, {xm}
    s_and_b32 s{S_T2}, s{S_T1}, {xm-1}
    s_add_u32 s{S_MB}, s{S_MB}, s{S_T2}
    s_lshr_b32 s{S_NB}, s{S_T0}, {gm.bit_length()-1}
    s_mul_i32 s{S_NB}, s{S_NB}, {xn}
    s_lshr_b32 s{S_T2}, s{S_T1}, {xm.bit_length()-1}
    s_add_u32 s{S_NB}, s{S_NB}, s{S_T2}""")

def emit_loader(e, c, srds, mid=None, dep=None, tail_extra=None):
    NB, KT, S = c.NB, c.KT, c.S
    NT = c.K//(32*KT)
    mbytes, wbytes, stage = gemm_lds(c)
    MPW = 8//NL
    IW = KT*2*NB//NL
    assert (KT*2*NB) % NL == 0 and KT <= 4
    MI = MPW*KT
    IPW = MI + IW
    NKS = c.K//32
    n = c.name
    e.c(f"---- loader {n}")
    fx = [load_srd(e, s, ka, add, sz) for (s, ka, add, sz) in srds]
    emit_map(e, c.xm, c.xn)
    e.i(f"s_sub_u32 s{S_T0}, s{S_WAVE}, 4")
    e.i(f"""s_lshl_b32 s{S_T1}, s{S_MB}, 3
    s_mul_i32 s{S_T2}, s{S_T0}, {MPW}
    s_add_u32 s{S_T1}, s{S_T1}, s{S_T2}
    s_mul_i32 s{S_T1}, s{S_T1}, {NKS*1024}
    v_lshl_add_u32 v8, v0, 4, s{S_T1}""")
    VMA = 8
    for i in range(1, MPW):
        e.i(f"v_add_u32 v{VMA+i}, {i*NKS*1024}, v8")
    VW = VMA + MPW
    M, sh = magic_div(NB, 8*KT*NB)
    e.i(f"""v_lshrrev_b32 v40, 4, v0
    s_mul_i32 s{S_T1}, s{S_T0}, {4*IW}
    v_add_u32 v40, s{S_T1}, v40
    v_bfe_u32 v41, v0, 2, 2
    v_and_b32 v42, 3, v0
    s_mov_b32 s{S_T2}, {c.wstride}""")
    c.wcol_base(e, S_T1)
    swzbit = 1 if c.korder == 'natural' else 0
    for i in range(IW):
        e.i(f"""v_add_u32 v43, {4*i}, v40
        v_mul_u32_u24 v44, {M}, v43
        v_lshrrev_b32 v44, {sh}, v44
        v_mul_u32_u24 v45, {NB}, v44
        v_sub_u32 v45, v43, v45
        v_bfe_u32 v46, v44, {swzbit}, 1
        v_lshlrev_b32 v46, 1, v46
        v_xor_b32 v46, v46, v42
        v_lshl_add_u32 v46, v46, 4, s{S_T1}
        v_lshl_add_u32 v44, v44, 2, v41
        v_mul_lo_u32 v44, v44, s{S_T2}""")
        c.wcol_lane(e, 45, 47)
        e.i(f"v_add3_u32 v{VW+i}, v44, v45, v46")
    e.i(f"""s_mul_i32 s{S_T3}, s{S_T0}, {MPW*KT*1024}
    s_mul_i32 s{S_T4}, s{S_T0}, {IW*1024}
    s_add_u32 s{S_T4}, s{S_T4}, {mbytes}
    s_mov_b32 s{S_MT}, 0
    s_mov_b32 s{S_WT}, 0
    s_waitcnt lgkmcnt(0)""")
    for f in fx: f()
    if getattr(c, 'loader_pre', None): c.loader_pre(e)
    def issue_m(slot):
        e.i(f"s_add_u32 m0, {slot}, s{S_T3}")
        for i in range(MPW):
            if i: e.i(f"s_add_u32 m0, m0, {KT*1024}")
            e.i("s_nop 0")
            for j in range(KT):
                e.i(f"buffer_load_dwordx4 v{VMA+i}, s[{S_M}:{S_M+3}], s{S_MT} offen offset:{j*1024} lds")
        e.i(f"s_add_u32 s{S_MT}, s{S_MT}, {KT*1024}")
    def issue_w(slot):
        e.i(f"s_add_u32 m0, {slot}, s{S_T4}")
        for i in range(IW):
            if i: e.i(f"s_add_u32 m0, m0, 1024")
            e.i("s_nop 0")
            e.i(f"buffer_load_dwordx4 v{VW+i}, s[{S_W}:{S_W+3}], s{S_WT} offen lds")
        e.i(f"s_add_u32 s{S_WT}, s{S_WT}, {32*KT*c.wstride}")
    def adv():
        e.i(f"""s_add_u32 s{S_SLOT}, s{S_SLOT}, {stage}
        s_cmp_eq_u32 s{S_SLOT}, {S*stage}
        s_cselect_b32 s{S_SLOT}, 0, s{S_SLOT}""")
    D = S - 1
    def loop(cnt, body, lab):
        e.i(f"s_mov_b32 s{S_CNT}, {cnt}")
        e.label(lab); body()
        e.i(f"s_sub_u32 s{S_CNT}, s{S_CNT}, 1\ns_cmp_lg_u32 s{S_CNT}, 0\ns_cbranch_scc1 {lab}")
    if dep is None:
        e.i(f"s_mov_b32 s{S_SLOT}, 0")
        loop(D, lambda: (issue_m(f"s{S_SLOT}"), issue_w(f"s{S_SLOT}"), adv()), f"{n}_lpro")
        first = [(D-1)*IPW]*0
        t0 = 0
    else:
        e.i(f"s_mov_b32 s{S_SLOT}, 0")
        loop(D, lambda: (issue_w(f"s{S_SLOT}"), e.i(f"s_add_u32 s{S_SLOT}, s{S_SLOT}, {stage}")), f"{n}_lprw")
        if mid: mid()
        dep()
        e.i(f"s_mov_b32 s{S_SLOT}, 0")
        loop(D, lambda: (issue_m(f"s{S_SLOT}"), e.i(f"s_add_u32 s{S_SLOT}, s{S_SLOT}, {stage}")), f"{n}_lprm")
        for t in range(D):
            e.i(f"s_waitcnt vmcnt({(D-1-t)*MI + t*IPW})\ns_barrier")
            issue_m(f"s{S_SLOT}"); issue_w(f"s{S_SLOT}"); adv()
        t0 = D
    lm = f"{n}_lmain"
    loop(NT-D-t0, lambda: (e.i(f"s_waitcnt vmcnt({(D-1)*IPW})\ns_barrier"), issue_m(f"s{S_SLOT}"), issue_w(f"s{S_SLOT}"), adv()), lm)
    nx = 0
    if tail_extra:
        nx = tail_extra[0]; tail_extra[1](e)
    for i in range(D):
        e.i(f"s_waitcnt vmcnt({(D-1-i)*IPW + nx})\ns_barrier")
    assert D*IPW + nx <= 63, D*IPW

def acc(c, i, j): return c.VACC + (j*4 + i)*4

def emit_consumer(e, c, srds, epilogue, st, dep_barrier=True, free_barrier=True):
    NB, KT, S = c.NB, c.KT, c.S
    NT = c.K//(32*KT)
    mbytes, wbytes, stage = gemm_lds(c)
    n = c.name
    SETSZ = 16 + 4*NB
    def mreg(p, i): return c.VF + p*SETSZ + 4*i
    def wreg(p, j): return c.VF + p*SETSZ + 16 + 4*j
    VM, VE, VO, VS = c.VA, c.VA+1, c.VA+2, c.VA+3
    VMC, VEC, VOC, VSC = c.VA+4, c.VA+5, c.VA+6, c.VA+7
    e.c(f"---- consumer {n}")
    fx = [load_srd(e, s, ka, add, sz) for (s, ka, add, sz) in srds]
    emit_map(e, c.xm, c.xn)
    if c.korder == 'natural':  gterm = f"v_mul_u32_u24 v{VE}, {2*NB*256}, v1"; rho = NB*256
    elif c.korder == 'perm':   gterm = f"v_mul_u32_u24 v{VE}, {NB*256}, v1"; rho = 4*NB*256
    else:
        gterm = f"v_lshrrev_b32 v2, 1, v1\nv_and_b32 v3, 1, v1\nv_lshl_add_u32 v2, v2, 2, v3\nv_mul_u32_u24 v{VE}, {NB*256}, v2"; rho = 2*NB*256
    e.i(f"""s_lshr_b32 s{S_T0}, s{S_WAVE}, 1
    s_mul_i32 s{S_T0}, s{S_T0}, {4*KT*1024}
    v_lshl_add_u32 v{VM}, v0, 4, s{S_T0}
    v_lshrrev_b32 v1, 4, v0
    {gterm}
    v_bfe_u32 v1, v0, 2, 2
    v_lshl_add_u32 v{VE}, v1, 6, v{VE}
    v_and_b32 v1, 3, v0
    v_lshl_add_u32 v{VE}, v1, 3, v{VE}
    v_add_u32 v{VE}, {mbytes}, v{VE}
    v_bfe_u32 v1, v0, 4, 1
    v_lshlrev_b32 v1, 5, v1
    s_and_b32 s{S_T0}, s{S_WAVE}, 1""")
    if c.s_nb is not None:
        e.i(f"""s_lshl_b32 s{S_T1}, s{S_T0}, 5
        v_xor_b32 v2, s{S_T1}, v1
        v_add_u32 v2, {c.s_nb*256}, v2
        v_add_u32 v{VS}, v{VE}, v2""")
    e.i(f"""s_mul_i32 s{S_T1}, s{S_T0}, {c.e_mul*256}
    v_xor_b32 v2, 32, v1
    v_add3_u32 v{VO}, v{VE}, v2, s{S_T1}
    v_add3_u32 v{VE}, v{VE}, v1, s{S_T1}""")
    z = c.VF
    e.i("\n".join(f"v_mov_b32 v{z+i}, 0" for i in range(4)))
    e.i("s_nop 1")
    for b in range(NB):
        a = c.VACC + 16*b
        e.i(f"v_mfma_f32_32x32x16_bf16 v[{a}:{a+15}], v[{z}:{z+3}], v[{z}:{z+3}], 0")
    e.i("s_waitcnt lgkmcnt(0)")
    for f in fx: f()
    if getattr(c, 'consumer_pre0', None): c.consumer_pre0(e)
    if dep_barrier: e.i("s_barrier")
    st.stamp(e, n + "_dep")
    if getattr(c, 'consumer_pre', None): c.consumer_pre(e)
    e.i(f"s_mov_b32 s{S_SLOT}, 0")
    def reads(p, ks):
        mm = [f"ds_read_b128 v[{mreg(p,i)}:{mreg(p,i)+3}], v{VMC} offset:{(i*KT+ks)*1024}" for i in range(4)]
        ww = []
        for j in range(NB):
            w = wreg(p, j)
            if c.s_nb is not None and j == NB-1: va, o = VSC, 0
            else: va, o = (VEC if j % 2 == 0 else VOC), (j//2)*256
            o0 = 8*ks*NB*256 + o
            ww.append(f"ds_read_b64_tr_b16 v[{w}:{w+1}], v{va} offset:{o0}")
            ww.append(f"ds_read_b64_tr_b16 v[{w+2}:{w+3}], v{va} offset:{o0 + rho}")
        return mm + ww
    def mfma(p, i, j):
        a = acc(c, i, j)
        w = wreg(p, j); m = mreg(p, i)
        if c.swap(j):
            return f"v_mfma_f32_16x16x32_bf16 v[{a}:{a+3}], v[{m}:{m+3}], v[{w}:{w+3}], v[{a}:{a+3}]"
        return f"v_mfma_f32_16x16x32_bf16 v[{a}:{a+3}], v[{w}:{w+3}], v[{m}:{m+3}], v[{a}:{a+3}]"
    def step(pm, ks, with_mfma=True, with_reads=True, pre=None):
        pr = pm ^ 1
        rs = reads(pr, ks) if with_reads else []
        if with_mfma: e.i("s_waitcnt lgkmcnt(0)")
        if pre: pre()
        for j in range(NB):
            for i in range(4):
                if with_mfma: e.i(mfma(pm, i, j))
                k = c.rrate if with_mfma else 100
                for _ in range(k):
                    if rs: e.i(rs.pop(0))
        assert not rs
    def newslot():
        e.i(f"v_add_u32 v{VMC}, s{S_SLOT}, v{VM}\nv_add_u32 v{VEC}, s{S_SLOT}, v{VE}\nv_add_u32 v{VOC}, s{S_SLOT}, v{VO}")
        if c.s_nb is not None: e.i(f"v_add_u32 v{VSC}, s{S_SLOT}, v{VS}")
        e.i(f"""s_add_u32 s{S_SLOT}, s{S_SLOT}, {stage}
        s_cmp_eq_u32 s{S_SLOT}, {S*stage}
        s_cselect_b32 s{S_SLOT}, 0, s{S_SLOT}""")
    e.i("s_barrier")
    st.stamp(e, n + "_b0")
    if st.on: e.i("s_waitcnt lgkmcnt(0)")
    newslot()
    UN = c.unroll
    assert (KT*UN) % 2 == 0 and NT % UN == 0
    step(1, 0, with_mfma=False)
    e.i(f"s_mov_b32 s{S_CNT}, {NT//UN}")
    e.i(f"s_branch {n}_c1")
    lp = f"{n}_cloop"
    e(".p2align 6")
    e.label(lp)
    par = 1
    first = True
    for t in range(UN):
        for ks in range(KT):
            if ks == 0:
                def pre():
                    e.i("s_barrier")
                    newslot()
                step(par, ks, pre=pre)
            else:
                step(par, ks)
            if first:
                e.label(f"{n}_c1"); first = False
            par ^= 1
    e.i(f"""s_sub_u32 s{S_CNT}, s{S_CNT}, 1
    s_cmp_lg_u32 s{S_CNT}, 0
    s_cbranch_scc1 {lp}""")
    step(par, 0, with_reads=False, pre=(lambda: e.i("s_barrier")) if free_barrier else None)
    st.stamp(e, n + "_loop")
    e.i("s_nop 7")
    epilogue(e, c)
```

```python
from common import *
S_Q, S_O, S_P = 8, 12, 16
S_HEAD, S_QB, S_CNT, S_KOFF, S_VOFF, S_T0, S_T1, S_T2, S_QI, S_KH = 37, 38, 40, 41, 42, 43, 44, 45, 46, 47
VSEL = 4; VA_L = 1
VQ = [8, 16]; VL = [24, 28]; VO = [32, 48]; VNEG = [64, 80]
VS = [[96, 112], [128, 144]]; VP = [160, 168]
VK = [176, 184, 192, 200]; VV = [208, 216, 224, 232]
VPF = 240
NKB = 32
MERGE_STRIDE = 24576

def attn_map(e):
    e.i(f"""s_and_b32 s{S_T0}, s2, 7
    s_lshr_b32 s{S_T1}, s2, 3
    s_lshl_b32 s{S_HEAD}, s{S_T0}, 2
    s_lshr_b32 s{S_T2}, s{S_T1}, 3
    s_add_u32 s{S_HEAD}, s{S_HEAD}, s{S_T2}
    s_and_b32 s{S_QB}, s{S_T1}, 7""")

def emit_attn_setup(e, st):
    name = "att"
    f1 = load_srd(e, S_Q, KA_WS, WS_Q, 12*MB)
    f2 = load_srd(e, S_O, KA_WS, WS_O, 4*MB)
    e.i(f"s_load_dwordx2 s[20:21], s[0:1], {KA_WO}\ns_load_dwordx2 s[22:23], s[0:1], {KA_W2}\ns_load_dwordx2 s[24:25], s[0:1], {KA_W1}")
    attn_map(e)
    e.i(f"""s_and_b32 s{S_QI}, s{S_WAVE}, 3
    s_lshr_b32 s{S_KH}, s{S_WAVE}, 2
    s_lshl_b32 s{S_T0}, s{S_HEAD}, 17
    s_add_u32 s50, s{S_T0}, {4*MB}
    s_lshl_b32 s{S_T1}, s{S_KH}, 16
    s_add_u32 s{S_KOFF}, s50, s{S_T1}
    s_add_u32 s{S_VOFF}, s{S_KOFF}, {4*MB}
    v_lshlrev_b32 v{VA_L}, 4, v0
    s_lshl_b32 s{S_T0}, s{S_HEAD}, 6
    s_lshl_b32 s{S_T1}, s{S_QB}, 3
    s_add_u32 s{S_T0}, s{S_T0}, s{S_T1}
    s_lshl_b32 s{S_T1}, s{S_QI}, 1
    s_add_u32 s{S_T0}, s{S_T0}, s{S_T1}
    s_lshl_b32 s48, s{S_T0}, 11
    s_add_u32 s49, s48, 2048""")
    e.i(f"""v_and_b32 v2, 3, v0
    v_bfe_u32 v3, v0, 2, 1
    v_bfe_u32 v{VSEL}, v0, 4, 1
    v_xor_b32 v3, v3, v{VSEL}
    v_or_b32 v2, v2, v3
    v_cmp_eq_u32 vcc, 0, v2
    v_mov_b32 v3, 0x3f803f80
    s_nop 0
    v_cndmask_b32 v{VSEL}, 0, v3, vcc
    v_mov_b32 v{VSEL+1}, v{VSEL}
    v_mov_b32 v{VSEL+2}, v{VSEL}
    v_mov_b32 v{VSEL+3}, v{VSEL}""")
    for b in range(2):
        for r in range(4): e.i(f"v_mov_b32 v{VL[b]+r}, 0")
        for r in range(16): e.i(f"v_mov_b32 v{VO[b]+r}, 0")
        for r in range(4, 8): e.i(f"v_mov_b32 v{VP[b]+r}, 0")
    e.i("s_waitcnt lgkmcnt(0)")
    f1(); f2()
    e.i(f"""s_lshl_b32 s{S_T0}, s2, 3
    s_add_u32 s{S_T0}, s{S_T0}, s{S_WAVE}
    v_lshlrev_b32 v{VPF}, 7, v0
    s_mov_b32 s{S_P+3}, 0x00020000
    s_cmp_lt_u32 s{S_T0}, 256
    s_cbranch_scc0 {name}_pf1
    s_mov_b32 s{S_P}, s20
    s_mov_b32 s{S_P+1}, s21
    s_mov_b32 s{S_P+2}, {2*MB}
    s_branch {name}_pf3""")
    e.label(f"{name}_pf1")
    e.i(f"""s_sub_u32 s{S_T0}, s{S_T0}, 256
    s_cmp_lt_u32 s{S_T0}, 896
    s_cbranch_scc0 {name}_pf2
    s_mov_b32 s{S_P}, s22
    s_mov_b32 s{S_P+1}, s23
    s_mov_b32 s{S_P+2}, {3584*2048}
    s_branch {name}_pf3""")
    e.label(f"{name}_pf2")
    e.i(f"""s_sub_u32 s{S_T0}, s{S_T0}, 896
    s_mov_b32 s{S_P}, s24
    s_mov_b32 s{S_P+1}, s25
    s_mov_b32 s{S_P+2}, {3584*2048}""")
    e.label(f"{name}_pf3")
    e.i(f"s_lshl_b32 s51, s{S_T0}, 13")

def emit_attn_main(e, st, lab_kh0_done, lab_kh1_done):
    name = "att"
    def ld2(reg, soff, adv=True):
        e.i(f"""buffer_load_dwordx4 v[{reg}:{reg+3}], v{VA_L}, s[{S_Q}:{S_Q+3}], s{soff} offen
        buffer_load_dwordx4 v[{reg+4}:{reg+7}], v{VA_L}, s[{S_Q}:{S_Q+3}], s{soff} offen offset:1024""")
        if adv: e.i(f"s_add_u32 s{soff}, s{soff}, 2048")
    def ldK(slot): ld2(VK[slot], S_KOFF)
    def ldV(slot): ld2(VV[slot], S_VOFF)
    for b in range(2): ld2(VQ[b], 48+b, False)
    ld2(VV[3], 50, False)
    ldK(0)
    for i in range(3):
        ldK(i+1); ldV(i)
    def qk0(b, sp, kr, cin): return f"v_mfma_f32_32x32x16_bf16 v[{VS[b][sp]}:{VS[b][sp]+15}], v[{kr}:{kr+3}], v[{VQ[b]}:{VQ[b]+3}], {cin}"
    def qk1(b, sp, kr): return f"v_mfma_f32_32x32x16_bf16 v[{VS[b][sp]}:{VS[b][sp]+15}], v[{kr+4}:{kr+7}], v[{VQ[b]+4}:{VQ[b]+7}], v[{VS[b][sp]}:{VS[b][sp]+15}]"
    def pv(b, vs, h): return f"v_mfma_f32_32x32x16_bf16 v[{VO[b]}:{VO[b]+15}], v[{VV[vs]+4*h}:{VV[vs]+4*h+3}], v[{VP[b]+4*h}:{VP[b]+4*h+3}], v[{VO[b]}:{VO[b]+15}]"
    def ls(b, h): return f"v_mfma_f32_16x16x32_bf16 v[{VL[b]}:{VL[b]+3}], v[{VSEL}:{VSEL+3}], v[{VP[b]+4*h}:{VP[b]+4*h+3}], v[{VL[b]}:{VL[b]+3}]"
    def NEG(b): return f"v[{VNEG[b]}:{VNEG[b]+15}]"
    def tilemax(s, d, t):
        e.i(f"v_max3_f32 v{d}, v{s}, v{s+1}, v{s+2}")
        for r in range(3, 15, 2): e.i(f"v_max3_f32 v{d}, v{d}, v{s+r}, v{s+r+1}")
        e.i(f"""v_max_f32 v{d}, v{d}, v{s+15}
        v_mov_b32 v{t}, v{d}
        s_nop 1
        v_permlane32_swap_b32 v{t}, v{d}
        s_nop 1
        v_max_f32 v{d}, v{d}, v{t}""")
    e.i("s_waitcnt vmcnt(12)")
    st.stamp(e, "att_q")
    for b in range(2):
        e.i(qk0(b, 1, VV[3], "0")); e.i(qk1(b, 1, VV[3]))
    e.i("s_nop 15\ns_nop 3")
    for b in range(2):
        tilemax(VS[b][1], 2, 3)
        e.i("v_sub_f32 v2, 0, v2")
        for r in range(16): e.i(f"v_mov_b32 v{VNEG[b]+r}, v2")
    for r in range(4, 8): e.i(f"v_mov_b32 v{VV[3]+r}, 0")
    e.i("s_nop 1")
    for b in range(2):
        e.i(qk0(b, 0, VK[0], NEG(b))); e.i(qk1(b, 0, VK[0]))
    e.i("s_nop 7")
    def half(b, kb, extra=None):
        g = kb & 1; n_ = g ^ 1; S = VS[b][g]
        kn = (kb+1) % 4; vc = kb; vp = (kb-1) % 4
        def X(*qs):
            for q in qs: e.i(f"v_exp_f32 v{S+q}, v{S+q}")
        def C(*ks):
            for k in ks: e.i(f"v_cvt_pk_bf16_f32 v{VP[b]+k}, v{S+2*k}, v{S+2*k+1}")
        def Z(i):
            if extra and i in extra: extra[i]()
        e.i(qk0(b, n_, VK[kn], NEG(b))); X(0,1,2,3); e.i(pv(b, vp, 1)); Z(0); C(0,1); X(4,5); e.i(ls(b, 1)); Z(1); X(6,7)
        e.i(qk1(b, n_, VK[kn])); Z(2); C(2,3); X(8,9); e.i(pv(b, vc, 0)); Z(3); X(10,11,12); e.i(ls(b, 0)); X(13,14,15); C(4,5,6,7)
    e.i(f"s_cmp_eq_u32 s{S_KH}, 1\ns_cbranch_scc0 {name}_np\ns_setprio 1\n{name}_np:")
    e.i(f"s_mov_b32 s{S_CNT}, {NKB//4}")
    e.i(f"buffer_load_dword v{VPF+1}, v{VPF}, s[{S_P}:{S_P+3}], s51 offen")
    lp = f"{name}_loop"
    e(".p2align 6")
    e.label(lp)
    for kb in range(4):
        e.i("s_waitcnt vmcnt(8)")
        half(0, kb)
        def one(reg, soff, off, adv):
            def f():
                e.i(f"buffer_load_dwordx4 v[{reg}:{reg+3}], v{VA_L}, s[{S_Q}:{S_Q+3}], s{soff} offen offset:{off}")
                if adv: e.i(f"s_add_u32 s{soff}, s{soff}, 2048")
            return f
        vsl = (kb-1) % 4
        half(1, kb, extra={0: one(VK[kb], S_KOFF, 0, False), 1: one(VK[kb]+4, S_KOFF, 1024, True), 2: one(VV[vsl], S_VOFF, 0, False), 3: one(VV[vsl]+4, S_VOFF, 1024, True)})
    e.i(f"""s_sub_u32 s{S_CNT}, s{S_CNT}, 1
    s_cmp_lg_u32 s{S_CNT}, 0
    s_cbranch_scc1 {lp}""")
    e.i("s_nop 1")
    for b in range(2):
        e.i(pv(b, 3, 1)); e.i(ls(b, 1))
    e.i("s_setprio 0")
    st.stamp(e, "att_loop")
    e.i(f"""s_nop 15
    s_nop 3
    s_mul_i32 s{S_T0}, s{S_QI}, {MERGE_STRIDE}
    v_lshl_add_u32 v2, v0, 4, s{S_T0}
    s_cmp_eq_u32 s{S_KH}, 0
    s_cbranch_scc1 {name}_rd""")
    for b in range(2):
        for q in range(4):
            e.i(f"ds_write_b128 v2, v[{VO[b]+4*q}:{VO[b]+4*q+3}] offset:{(b*4+q)*1024}")
    e.i(f"""v_mov_b32 v{VL[0]+1}, v{VL[1]}
    ds_write_b64 v2, v[{VL[0]}:{VL[0]+1}] offset:{8*1024}
    s_waitcnt vmcnt(0) lgkmcnt(0)
    s_barrier
    s_branch {lab_kh1_done}""")
    e.label(f"{name}_rd")
    e.i("s_waitcnt vmcnt(0)\ns_barrier")
    for b in range(2):
        for q in range(4):
            r = VS[b][0] + 4*q
            e.i(f"ds_read_b128 v[{r}:{r+3}], v2 offset:{(b*4+q)*1024}")
    e.i(f"ds_read_b64 v[{VK[0]}:{VK[0]+1}], v2 offset:{8*1024}\ns_waitcnt lgkmcnt(0)")
    for b in range(2):
        for r in range(0, 16, 2):
            e.i(f"v_pk_add_f32 v[{VO[b]+r}:{VO[b]+r+1}], v[{VO[b]+r}:{VO[b]+r+1}], v[{VS[b][0]+r}:{VS[b][0]+r+1}]")
        e.i(f"v_add_f32 v{VL[b]}, v{VL[b]}, v{VK[0]+b}")
    e.i(f"""v_mov_b32 v2, 0x5f800000
    v_cmp_nlt_f32 vcc, v{VL[0]}, v2
    v_cmp_nlt_f32 s[52:53], v{VL[1]}, v2
    s_nop 4
    s_or_b64 vcc, vcc, s[52:53]
    s_cbranch_vccnz {name}_slow""")
    e.label(f"{name}_fin")
    e.i(f"""s_lshl_b32 s{S_T0}, s{S_QB}, 4
    s_lshl_b32 s{S_T1}, s{S_QI}, 2
    s_add_u32 s{S_T0}, s{S_T0}, s{S_T1}
    s_lshl_b32 s{S_T0}, s{S_T0}, 5
    s_add_u32 s{S_T0}, s{S_T0}, s{S_HEAD}
    s_lshl_b32 s{S_T0}, s{S_T0}, 10
    v_bfe_u32 v3, v0, 4, 1
    v_lshlrev_b32 v3, 15, v3
    v_lshrrev_b32 v2, 5, v0
    v_lshl_add_u32 v3, v2, 8, v3
    v_and_b32 v2, 15, v0
    v_lshl_add_u32 v3, v2, 4, v3
    v_add_u32 v3, s{S_T0}, v3""")
    for b in range(2):
        e.i(f"v_rcp_f32 v4, v{VL[b]}\ns_nop 0\nv_mov_b32 v5, v4")
        for r in range(0, 16, 2): e.i(f"v_pk_mul_f32 v[{VO[b]+r}:{VO[b]+r+1}], v[{VO[b]+r}:{VO[b]+r+1}], v[4:5]")
        for r in range(8): e.i(f"v_cvt_pk_bf16_f32 v{VP[b]+r}, v{VO[b]+2*r}, v{VO[b]+2*r+1}")
        e.i(f"""s_mov_b32 s{S_T1}, {b*65536}
        buffer_store_dwordx4 v[{VP[b]}:{VP[b]+3}], v3, s[{S_O}:{S_O+3}], s{S_T1} offen sc1
        buffer_store_dwordx4 v[{VP[b]+4}:{VP[b]+7}], v3, s[{S_O}:{S_O+3}], s{S_T1} offen offset:512 sc1""")
    e.i(f"s_branch {lab_kh0_done}")
    e.label(f"{name}_slow")
    e.i(f"""s_waitcnt vmcnt(0)
    s_mov_b32 s{S_KOFF}, s50
    s_add_u32 s{S_VOFF}, s50, {4*MB}""")
    VM_ = [VNEG[0], VNEG[1]]
    for b in range(2):
        e.i(f"v_mov_b32 v{VM_[b]}, 0xff800000")
        for r in range(4): e.i(f"v_mov_b32 v{VL[b]+r}, 0")
        for r in range(16): e.i(f"v_mov_b32 v{VO[b]+r}, 0")
    e.i(f"s_mov_b32 s{S_CNT}, 64")
    e.label(f"{name}_sloop")
    ldK(0); ldV(0)
    e.i("s_waitcnt vmcnt(0)")
    for b in range(2):
        s = VS[b][0]
        e.i(qk0(b, 0, VK[0], "0")); e.i(qk1(b, 0, VK[0]))
        e.i("s_nop 15\ns_nop 3")
        tilemax(s, 2, 3)
        e.i(f"""v_max_f32 v2, v2, v{VM_[b]}
        v_sub_f32 v3, v{VM_[b]}, v2
        v_exp_f32 v3, v3
        v_mov_b32 v{VM_[b]}, v2
        s_nop 0
        v_mul_f32 v{VL[b]}, v{VL[b]}, v3""")
        for r in range(16): e.i(f"v_mul_f32 v{VO[b]+r}, v{VO[b]+r}, v3")
        for r in range(16): e.i(f"v_sub_f32 v{s+r}, v{s+r}, v2")
        for r in range(16): e.i(f"v_exp_f32 v{s+r}, v{s+r}")
        e.i("s_nop 0")
        for k in range(8): e.i(f"v_cvt_pk_bf16_f32 v{VP[b]+k}, v{s+2*k}, v{s+2*k+1}")
        e.i("s_nop 1")
        e.i(pv(b, 0, 0)); e.i(ls(b, 0)); e.i(pv(b, 0, 1)); e.i(ls(b, 1))
        e.i("s_nop 15\ns_nop 3")
    e.i(f"""s_sub_u32 s{S_CNT}, s{S_CNT}, 1
    s_cmp_lg_u32 s{S_CNT}, 0
    s_cbranch_scc1 {name}_sloop
    s_branch {name}_fin""")
```

```python
from gemm import *
S_O, S_A, S_B, S_C = 16, 20, 24, 28
SC = " sc1"

def cfg_qkv():
    c = Cfg(name="qkv", NB=6, KT=2, S=3, unroll=2, rrate=1, K=1024, wstride=6144, korder='natural',
            VACC=128, VF=32, VA=8, e_mul=3, s_nb=None, swap=lambda j: j >= 4, xm=8, xn=4)
    c.lds_total = gemm_lds(c)[2]*c.S
    c.wcol_base = lambda e, s: e.i(f"s_lshl_b32 s{s}, s{S_NB}, 7")
    def wl(e, v, t):
        e.i(f"""v_mul_u32_u24 v{t}, 43, v{v}
        v_lshrrev_b32 v{t}, 7, v{t}
        v_mad_i32_i24 v{v}, v{t}, -3, v{v}
        v_lshlrev_b32 v{v}, 11, v{v}
        v_lshl_add_u32 v{v}, v{t}, 6, v{v}""")
    c.wcol_lane = wl
    c.l_srds = [(S_M, KA_WS, WS_XN, 4*MB), (S_W, KA_WQKV, 0, 1024*3072*2), (S_A, KA_W1, 0, 1024*3584*2), (S_B, KA_WS, WS_CS1, 16*3584*4)]
    c.c_srds = [(S_O, KA_WS, WS_Q, 12*MB)]
    def epi(e, c):
        qs = f2u(math.log2(math.e)/math.sqrt(32.0))
        e.i(f"""s_lshl_b32 s{S_T0}, s{S_NB}, 1
        s_and_b32 s{S_T1}, s{S_WAVE}, 1
        s_add_u32 s{S_T0}, s{S_T0}, s{S_T1}
        s_lshl_b32 s{S_T0}, s{S_T0}, 6
        s_lshl_b32 s{S_T1}, s{S_MB}, 2
        s_add_u32 s{S_T0}, s{S_T0}, s{S_T1}
        s_and_b32 s{S_T1}, s{S_WAVE}, 2
        s_add_u32 s{S_T0}, s{S_T0}, s{S_T1}
        s_lshl_b32 s{S_T0}, s{S_T0}, 11
        v_lshrrev_b32 v1, 5, v0
        v_lshlrev_b32 v1, 10, v1
        v_bfe_u32 v2, v0, 4, 1
        v_lshl_add_u32 v1, v2, 9, v1
        v_add_u32 v1, s{S_T0}, v1
        v_and_b32 v2, 15, v0
        v_lshl_add_u32 v16, v2, 4, v1
        v_bfe_u32 v3, v0, 3, 1
        v_and_b32 v2, 7, v0
        v_lshl_add_u32 v2, v3, 4, v2
        v_lshl_add_u32 v17, v2, 4, v1
        s_mov_b32 s{S_T1}, {4*MB}
        s_mov_b32 s{S_T2}, {8*MB}
        s_mov_b32 s{S_T3}, {qs}
        s_mov_b32 s{S_T4}, {qs}""")
        T = 32
        def pack(t, a, b):
            e.i(f"""v_cvt_pk_bf16_f32 v{t}, v{a}, v{a+1}
            v_cvt_pk_bf16_f32 v{t+1}, v{a+2}, v{a+3}
            v_cvt_pk_bf16_f32 v{t+2}, v{b}, v{b+1}
            v_cvt_pk_bf16_f32 v{t+3}, v{b+2}, v{b+3}""")
        k = 0
        for i in range(4):
            t = T + 4*k; k += 1
            pack(t, acc(c,i,2), acc(c,i,3))
            e.i(f"buffer_store_dwordx4 v[{t}:{t+3}], v17, s[{S_O}:{S_O+3}], s{S_T1} offen offset:{(i&1)*128 + (i>>1)*2048}{SC}")
        for tb in range(2):
            for ab in range(2):
                t = T + 4*k; k += 1
                pack(t, acc(c,2*tb,4+ab), acc(c,2*tb+1,4+ab))
                e.i(f"buffer_store_dwordx4 v[{t}:{t+3}], v16, s[{S_O}:{S_O+3}], s{S_T2} offen offset:{ab*256 + tb*2048}{SC}")
        for i in range(4):
            for j in range(2):
                a = acc(c,i,j)
                e.i(f"v_pk_mul_f32 v[{a}:{a+1}], v[{a}:{a+1}], s[{S_T3}:{S_T4}]\nv_pk_mul_f32 v[{a+2}:{a+3}], v[{a+2}:{a+3}], s[{S_T3}:{S_T4}]")
            t = T + 4*k; k += 1
            pack(t, acc(c,i,0), acc(c,i,1))
            e.i(f"buffer_store_dwordx4 v[{t}:{t+3}], v16, s[{S_O}:{S_O+3}], 0 offen offset:{(i&1)*256 + (i>>1)*2048}{SC}")
    c.epi = epi
    def cs_issue(e):
        e.i(f"""s_sub_u32 s{S_T0}, s{S_WAVE}, 4
        s_lshr_b32 s{S_T1}, s2, 4
        s_lshl_b32 s{S_T1}, s{S_T1}, 6
        v_lshrrev_b32 v48, 3, v0
        v_add_u32 v48, s{S_T1}, v48
        s_mov_b32 s{S_T2}, 7168
        v_mul_lo_u32 v48, v48, s{S_T2}
        v_and_b32 v49, 7, v0
        v_min_u32 v49, 6, v49
        s_mul_i32 s{S_T1}, s{S_T0}, 7
        v_add_u32 v49, s{S_T1}, v49
        s_and_b32 s{S_T1}, s2, 15
        s_mul_i32 s{S_T2}, s{S_T1}, 448
        v_lshl_add_u32 v50, v49, 4, s{S_T2}
        v_add_u32 v48, v48, v50
        s_mov_b32 s{S_T2}, 0""")
        for i in range(8):
            e.i(f"buffer_load_dwordx4 v[{64+4*i}:{67+4*i}], v48, s[{S_A}:{S_A+3}], s{S_T2} offen\ns_add_u32 s{S_T2}, s{S_T2}, {8*7168}")
    def cs_finish(e):
        e.i("s_waitcnt vmcnt(0)")
        for q in range(4):
            e.i(f"v_lshlrev_b32 v{96+2*q}, 16, v{64+q}\nv_and_b32 v{97+2*q}, 0xffff0000, v{64+q}")
        for i in range(1, 8):
            for q in range(4):
                e.i(f"v_lshlrev_b32 v104, 16, v{64+4*i+q}\nv_and_b32 v105, 0xffff0000, v{64+4*i+q}\nv_pk_add_f32 v[{96+2*q}:{97+2*q}], v[{96+2*q}:{97+2*q}], v[104:105]")
        e.i("s_nop 1")
        for r in range(8): e.i(f"v_add_f32_dpp v{96+r}, v{96+r}, v{96+r} row_ror:8 row_mask:0xf bank_mask:0xf")
        for sw in ("v_permlane16_swap_b32", "v_permlane32_swap_b32"):
            for r in range(8): e.i(f"v_mov_b32 v{104+r}, v{96+r}")
            e.i("s_nop 1")
            for r in range(8): e.i(f"{sw} v{104+r}, v{96+r}")
            e.i("s_nop 1")
            for r in range(8): e.i(f"v_add_f32 v{96+r}, v{96+r}, v{104+r}")
        e.i(f"""s_lshr_b32 s{S_T1}, s2, 4
        s_mul_i32 s{S_T1}, s{S_T1}, 14336
        s_and_b32 s{S_T2}, s2, 15
        s_mul_i32 s{S_T2}, s{S_T2}, 896
        s_add_u32 s{S_T1}, s{S_T1}, s{S_T2}
        v_lshl_add_u32 v50, v49, 5, s{S_T1}
        s_mov_b64 s[50:51], exec
        s_mov_b64 exec, 0x7f
        buffer_store_dwordx4 v[96:99], v50, s[{S_B}:{S_B+3}], 0 offen{SC}
        buffer_store_dwordx4 v[100:103], v50, s[{S_B}:{S_B+3}], 0 offen offset:16{SC}
        s_mov_b64 exec, s[50:51]""")
    c.tail_extra = (8, cs_issue); c.cs_finish = cs_finish
    return c

def rm_lane_addr(e, va, vb, base):
    e.i(f"""s_lshr_b32 s{S_T0}, s{S_WAVE}, 1
    s_lshl_b32 s{S_T0}, s{S_T0}, 13
    s_add_u32 s{S_T0}, s{S_T0}, {base}
    s_and_b32 s{S_T1}, s{S_WAVE}, 1
    s_lshl_b32 s{S_T1}, s{S_T1}, 2
    v_and_b32 v1, 15, v0
    v_lshrrev_b32 v2, 1, v1
    v_lshrrev_b32 v3, 5, v0
    v_add_u32 v3, s{S_T1}, v3
    v_lshl_add_u32 v1, v1, 7, s{S_T0}
    v_bfe_u32 v4, v0, 4, 1
    v_lshl_add_u32 v1, v4, 3, v1
    v_xor_b32 v4, v3, v2
    v_lshl_add_u32 v{va}, v4, 4, v1
    v_add_u32 v3, 2, v3
    v_xor_b32 v4, v3, v2
    v_lshl_add_u32 v{vb}, v4, 4, v1""")

def cfg_wo():
    c = Cfg(name="wo", NB=2, KT=2, S=5, unroll=2, rrate=2, K=1024, wstride=2048, korder='att',
            VACC=128, VF=32, VA=8, e_mul=1, s_nb=None, swap=lambda j: False, xm=4, xn=8)
    ring = gemm_lds(c)[2]*c.S
    X0 = ring; SCR = ring + 16384
    c.lds_total = SCR + 2048
    c.wcol_base = lambda e, s: e.i(f"s_lshl_b32 s{s}, s{S_NB}, 7")
    c.wcol_lane = lambda e, v, t: e.i(f"v_lshlrev_b32 v{v}, 6, v{v}")
    c.l_srds = [(S_M, KA_WS, WS_O, 4*MB), (S_W, KA_WO, 0, 2*MB), (S_A, KA_X, 0, 4*MB)]
    c.c_srds = [(S_O, KA_WS, WS_H, 4*MB), (S_B, KA_WS, WS_STAT, 256*1024)]
    def lpre(e):
        e.i(f"""s_lshl_b32 s{S_T1}, s{S_MB}, 7
        s_mul_i32 s{S_T2}, s{S_T0}, {128//NL}
        s_add_u32 s{S_T1}, s{S_T1}, s{S_T2}
        s_lshl_b32 s{S_T1}, s{S_T1}, 11
        s_lshl_b32 s{S_T2}, s{S_NB}, 7
        s_add_u32 s{S_T1}, s{S_T1}, s{S_T2}
        v_lshrrev_b32 v50, 3, v0
        v_lshl_add_u32 v50, v50, 11, s{S_T1}
        v_lshrrev_b32 v51, 4, v0
        v_and_b32 v52, 7, v0
        v_xor_b32 v53, v52, v51
        v_lshl_add_u32 v54, v53, 4, v50
        v_xor_b32 v53, 4, v53
        v_lshl_add_u32 v55, v53, 4, v50
        s_mul_i32 s{S_T2}, s{S_T0}, {16384//NL}
        s_add_u32 m0, s{S_T2}, {X0}
        s_mov_b32 s{S_T1}, 0""")
        for I in range(16//NL):
            e.i(f"buffer_load_dwordx4 v{54 + (I&1)}, s[{S_A}:{S_A+3}], s{S_T1} offen lds")
            e.i(f"s_add_u32 m0, m0, 1024\ns_add_u32 s{S_T1}, s{S_T1}, 16384")
    c.loader_pre = lpre
    def epi(e, c):
        rm_lane_addr(e, 16, 17, X0)
        for i in range(4):
            e.i(f"ds_read_b64 v[{32+4*i}:{33+4*i}], v16 offset:{i*2048}\nds_read_b64 v[{34+4*i}:{35+4*i}], v17 offset:{i*2048}")
        e.i(f"""s_lshl_b32 s{S_T0}, s{S_MB}, 3
        s_and_b32 s{S_T1}, s{S_WAVE}, 2
        s_lshl_b32 s{S_T1}, s{S_T1}, 1
        s_add_u32 s{S_T0}, s{S_T0}, s{S_T1}
        s_lshl_b32 s{S_T0}, s{S_T0}, 5
        s_lshl_b32 s{S_T1}, s{S_NB}, 1
        s_add_u32 s{S_T0}, s{S_T0}, s{S_T1}
        s_and_b32 s{S_T1}, s{S_WAVE}, 1
        s_add_u32 s{S_T0}, s{S_T0}, s{S_T1}
        s_lshl_b32 s{S_T0}, s{S_T0}, 10
        v_lshl_add_u32 v18, v0, 4, s{S_T0}
        s_waitcnt lgkmcnt(0)""")
        for i in range(4):
            a, b = acc(c,i,0), acc(c,i,1)
            x = 32+4*i
            e.i(f"""v_lshlrev_b32 v20, 16, v{x}
            v_and_b32 v21, 0xffff0000, v{x}
            v_lshlrev_b32 v22, 16, v{x+1}
            v_and_b32 v23, 0xffff0000, v{x+1}
            v_lshlrev_b32 v24, 16, v{x+2}
            v_and_b32 v25, 0xffff0000, v{x+2}
            v_lshlrev_b32 v26, 16, v{x+3}
            v_and_b32 v27, 0xffff0000, v{x+3}
            v_pk_add_f32 v[{a}:{a+1}], v[{a}:{a+1}], v[20:21]
            v_pk_add_f32 v[{a+2}:{a+3}], v[{a+2}:{a+3}], v[22:23]
            v_pk_add_f32 v[{b}:{b+1}], v[{b}:{b+1}], v[24:25]
            v_pk_add_f32 v[{b+2}:{b+3}], v[{b+2}:{b+3}], v[26:27]""")
            t = 64 + 4*i
            e.i(f"""v_cvt_pk_bf16_f32 v{t}, v{a}, v{a+1}
            v_cvt_pk_bf16_f32 v{t+1}, v{a+2}, v{a+3}
            v_cvt_pk_bf16_f32 v{t+2}, v{b}, v{b+1}
            v_cvt_pk_bf16_f32 v{t+3}, v{b+2}, v{b+3}
            s_mov_b32 s{S_T1}, {i*32768}
            buffer_store_dwordx4 v[{t}:{t+3}], v18, s[{S_O}:{S_O+3}], s{S_T1} offen{SC}""")
            s1, s2 = 80+2*i, 81+2*i
            e.i(f"""v_pk_add_f32 v[20:21], v[{a}:{a+1}], v[{a+2}:{a+3}]
            v_pk_add_f32 v[22:23], v[{b}:{b+1}], v[{b+2}:{b+3}]
            v_pk_mul_f32 v[24:25], v[{a}:{a+1}], v[{a}:{a+1}]
            v_pk_fma_f32 v[24:25], v[{a+2}:{a+3}], v[{a+2}:{a+3}], v[24:25]
            v_pk_fma_f32 v[24:25], v[{b}:{b+1}], v[{b}:{b+1}], v[24:25]
            v_pk_fma_f32 v[24:25], v[{b+2}:{b+3}], v[{b+2}:{b+3}], v[24:25]
            v_pk_add_f32 v[20:21], v[20:21], v[22:23]
            v_add_f32 v{s2}, v24, v25
            v_add_f32 v{s1}, v20, v21""")
        for sw in ("v_permlane32_swap_b32", "v_permlane16_swap_b32"):
            for r in range(8): e.i(f"v_mov_b32 v{88+r}, v{80+r}")
            e.i("s_nop 1")
            for r in range(8): e.i(f"{sw} v{88+r}, v{80+r}")
            e.i("s_nop 1")
            for r in range(8): e.i(f"v_add_f32 v{80+r}, v{80+r}, v{88+r}")
        e.i(f"""s_and_b32 s{S_T0}, s{S_WAVE}, 1
        s_lshl_b32 s{S_T0}, s{S_T0}, 10
        s_and_b32 s{S_T1}, s{S_WAVE}, 2
        s_lshl_b32 s{S_T1}, s{S_T1}, 8
        s_add_u32 s{S_T0}, s{S_T0}, s{S_T1}
        s_add_u32 s{S_T0}, s{S_T0}, {SCR}
        v_and_b32 v1, 15, v0
        v_lshl_add_u32 v1, v1, 3, s{S_T0}""")
        for i in range(4):
            e.i(f"ds_write_b64 v1, v[{80+2*i}:{81+2*i}] offset:{i*128}")
        e.i("s_waitcnt lgkmcnt(0)\ns_barrier")
        e.i(f"""s_cmp_ge_u32 s{S_WAVE}, 2
        s_cbranch_scc1 wo_nost
        s_lshl_b32 s{S_T0}, s{S_WAVE}, 6
        v_add_u32 v1, s{S_T0}, v0
        v_lshlrev_b32 v2, 3, v1
        v_add_u32 v3, {SCR}, v2
        ds_read_b64 v[20:21], v3
        ds_read_b64 v[22:23], v3 offset:1024
        s_lshl_b32 s{S_T0}, s{S_NB}, 14
        s_lshl_b32 s{S_T1}, s{S_MB}, 10
        s_add_u32 s{S_T0}, s{S_T0}, s{S_T1}
        v_add_u32 v2, s{S_T0}, v2
        s_waitcnt lgkmcnt(0)
        v_pk_add_f32 v[20:21], v[20:21], v[22:23]
        buffer_store_dwordx2 v[20:21], v2, s[{S_B}:{S_B+3}], 0 offen{SC}""")
        e.label("wo_nost")
    c.epi = epi
    return c

def cfg_w1():
    c = Cfg(name="w1", NB=7, KT=2, S=3, unroll=2, rrate=1, K=1024, wstride=7168, korder='perm',
            VACC=128, VF=32, VA=8, e_mul=4, s_nb=3, swap=lambda j: False, xm=8, xn=4)
    ring = gemm_lds(c)[2]*c.S
    ST = ring; CS = ring + 1024; B1 = CS + 896
    c.lds_total = B1 + 896
    c.wcol_base = lambda e, s: e.i(f"s_mul_i32 s{s}, s{S_NB}, 448")
    c.wcol_lane = lambda e, v, t: e.i(f"v_lshlrev_b32 v{v}, 6, v{v}")
    c.l_srds = [(S_M, KA_WS, WS_H, 4*MB), (S_W, KA_W1, 0, 1024*3584*2)]
    c.c_srds = [(S_O, KA_WS, WS_H1, SZ_H1), (S_A, KA_WS, WS_STAT, 256*1024), (S_B, KA_WS, WS_CS1, 16*3584*4), (S_C, KA_B1, 0, 7168)]
    def cpre0(e):
        e.i(f"""s_lshl_b32 s{S_T0}, s{S_WAVE}, 6
        v_add_u32 v16, s{S_T0}, v0
        s_mul_i32 s{S_T0}, s{S_NB}, 896
        v_lshl_add_u32 v20, v16, 2, s{S_T0}
        s_mul_i32 s{S_T0}, s{S_NB}, 448
        v_lshl_add_u32 v21, v16, 1, s{S_T0}""")
        for q in range(16):
            e.i(f"s_mov_b32 s{S_T1}, {q*14336}\nbuffer_load_dword v{56+q}, v20, s[{S_B}:{S_B+3}], s{S_T1} offen")
        e.i(f"buffer_load_ushort v72, v21, s[{S_C}:{S_C+3}], 0 offen")
        e.i("s_waitcnt vmcnt(0)")
        for q in range(1, 16):
            e.i(f"v_add_f32 v56, v56, v{56+q}")
        e.i("v_lshlrev_b32 v72, 16, v72")
    c.consumer_pre0 = cpre0
    def cpre(e):
        e.i(f"""v_lshrrev_b32 v17, 1, v16
        v_and_b32 v18, 1, v16
        s_lshl_b32 s{S_T0}, s{S_MB}, 10
        v_lshl_add_u32 v19, v17, 3, s{S_T0}
        v_lshl_add_u32 v19, v18, 17, v19""")
        for q in range(8):
            e.i(f"s_mov_b32 s{S_T1}, {q*16384}\nbuffer_load_dwordx2 v[{40+2*q}:{41+2*q}], v19, s[{S_A}:{S_A+3}], s{S_T1} offen")
        e.i(f"""v_lshlrev_b32 v22, 2, v16
        v_add_u32 v22, {CS}, v22
        v_cmp_gt_u32 vcc, 224, v16
        s_and_saveexec_b64 s[48:49], vcc
        s_cbranch_execz w1_ncs
        ds_write_b32 v22, v56
        ds_write_b32 v22, v72 offset:{B1-CS}""")
        e.label("w1_ncs")
        e.i("s_mov_b64 exec, s[48:49]\ns_waitcnt vmcnt(0)")
        for q in range(1, 8):
            e.i(f"v_pk_add_f32 v[40:41], v[40:41], v[{40+2*q}:{41+2*q}]")
        e.i(f"""s_nop 1
        v_add_f32_dpp v40, v40, v40 quad_perm:[1,0,3,2] row_mask:0xf bank_mask:0xf
        v_add_f32_dpp v41, v41, v41 quad_perm:[1,0,3,2] row_mask:0xf bank_mask:0xf
        v_mul_f32 v40, 0x3a800000, v40
        v_mul_f32 v41, 0x3a800000, v41
        v_fma_f32 v41, -v40, v40, v41
        v_add_f32 v41, 0x3727c5ac, v41
        v_rsq_f32 v42, v41
        s_nop 0
        v_mul_f32 v43, v40, v42
        v_sub_f32 v43, 0, v43
        v_lshlrev_b32 v22, 3, v17
        v_add_u32 v22, {ST}, v22
        ds_write_b64 v22, v[42:43]
        s_waitcnt lgkmcnt(0)""")
    c.consumer_pre = cpre
    C1 = -2.0*math.log2(math.e)*math.sqrt(2.0/math.pi)
    C2 = C1*0.044715
    def epi(e, c):
        e.i(f"""s_lshr_b32 s{S_T0}, s{S_WAVE}, 1
        s_lshl_b32 s{S_T0}, s{S_T0}, 9
        s_add_u32 s{S_T0}, s{S_T0}, {ST}
        v_and_b32 v1, 15, v0
        v_lshl_add_u32 v1, v1, 3, s{S_T0}""")
        for i in range(4):
            e.i(f"ds_read_b64 v[{16+2*i}:{17+2*i}], v1 offset:{i*128}")
        e.i(f"""s_and_b32 s{S_T0}, s{S_WAVE}, 1
        v_lshrrev_b32 v2, 4, v0
        v_lshlrev_b32 v2, 4, v2
        v_add_u32 v2, {CS}, v2
        s_lshl_b32 s{S_T1}, s{S_T0}, 9
        v_add_u32 v3, s{S_T1}, v2
        s_lshl_b32 s{S_T1}, s{S_T0}, 6
        s_add_u32 s{S_T1}, s{S_T1}, 384
        v_add_u32 v4, s{S_T1}, v2""")
        for j in range(7):
            va, o = (3, j*64) if j < 6 else (4, 0)
            e.i(f"ds_read_b128 v[{32+8*j}:{35+8*j}], v{va} offset:{o}\nds_read_b128 v[{36+8*j}:{39+8*j}], v{va} offset:{B1-CS+o}")
        e.i(f"""s_lshl_b32 s{S_T1}, s{S_MB}, 3
        s_and_b32 s{S_T2}, s{S_WAVE}, 2
        s_lshl_b32 s{S_T2}, s{S_T2}, 1
        s_add_u32 s{S_T1}, s{S_T1}, s{S_T2}
        s_mul_i32 s{S_T1}, s{S_T1}, 112
        s_mul_i32 s{S_T2}, s{S_NB}, 7
        s_add_u32 s{S_T1}, s{S_T1}, s{S_T2}
        s_lshl_b32 s{S_T1}, s{S_T1}, 10
        s_lshl_b32 s{S_T2}, s{S_T0}, 12
        s_add_u32 s{S_T2}, s{S_T2}, s{S_T1}
        v_lshl_add_u32 v5, v0, 4, s{S_T2}
        s_lshl_b32 s{S_T2}, s{S_T0}, 3
        s_add_u32 s{S_T2}, s{S_T2}, s{S_T1}
        s_add_u32 s{S_T2}, s{S_T2}, 3072
        v_lshl_add_u32 v6, v0, 4, s{S_T2}
        s_mov_b32 s52, {f2u(C2)}
        s_mov_b32 s53, {f2u(C2)}
        v_mov_b32 v112, {f2u(C1)}
        v_mov_b32 v113, {f2u(C1)}
        s_waitcnt lgkmcnt(0)""")
        def gelu8(items):
            n_ = len(items); tmp = [96 + 4*k for k in range(n_)]
            for k, (x, cs, b1, st_, d) in enumerate(items):
                e.i(f"v_pk_fma_f32 v[{tmp[k]}:{tmp[k]+1}], v[{cs}:{cs+1}], v[{st_}:{st_+1}], v[{b1}:{b1+1}] op_sel:[0,1,0] op_sel_hi:[1,1,1]")
            for k, (x, cs, b1, st_, d) in enumerate(items):
                e.i(f"v_pk_fma_f32 v[{x}:{x+1}], v[{x}:{x+1}], v[{st_}:{st_+1}], v[{tmp[k]}:{tmp[k]+1}] op_sel_hi:[1,0,1]")
            for k, (x, cs, b1, st_, d) in enumerate(items):
                e.i(f"v_pk_mul_f32 v[{tmp[k]}:{tmp[k]+1}], v[{x}:{x+1}], v[{x}:{x+1}]")
            for k, (x, cs, b1, st_, d) in enumerate(items):
                e.i(f"v_pk_fma_f32 v[{tmp[k]}:{tmp[k]+1}], v[{tmp[k]}:{tmp[k]+1}], s[52:53], v[112:113]")
            for k, (x, cs, b1, st_, d) in enumerate(items):
                e.i(f"v_pk_mul_f32 v[{tmp[k]}:{tmp[k]+1}], v[{tmp[k]}:{tmp[k]+1}], v[{x}:{x+1}]")
            for k in range(n_):
                e.i(f"v_exp_f32 v{tmp[k]}, v{tmp[k]}\nv_exp_f32 v{tmp[k]+1}, v{tmp[k]+1}")
            for k in range(n_):
                e.i(f"v_pk_add_f32 v[{tmp[k]}:{tmp[k]+1}], v[{tmp[k]}:{tmp[k]+1}], 1.0 op_sel_hi:[1,0]")
            for k in range(n_):
                e.i(f"v_rcp_f32 v{tmp[k]}, v{tmp[k]}\nv_rcp_f32 v{tmp[k]+1}, v{tmp[k]+1}")
            for k, (x, cs, b1, st_, d) in enumerate(items):
                e.i(f"v_pk_mul_f32 v[{x}:{x+1}], v[{x}:{x+1}], v[{tmp[k]}:{tmp[k]+1}]")
            for k, (x, cs, b1, st_, d) in enumerate(items):
                e.i(f"v_cvt_pk_bf16_f32 v{d}, v{x}, v{x+1}")
        k = 0
        for jp in range(3):
            for i in range(4):
                t = 116 + 4*(k % 2); k += 1
                items = []
                for jj in range(2):
                    j = 2*jp + jj
                    for h in range(2):
                        items.append((acc(c,i,j)+2*h, 32+8*j+2*h, 36+8*j+2*h, 16+2*i, t+2*jj+h))
                gelu8(items)
                e.i(f"s_mov_b32 s{S_T1}, {i*112*1024 + jp*1024}\nbuffer_store_dwordx4 v[{t}:{t+3}], v5, s[{S_O}:{S_O+3}], s{S_T1} offen{SC}")
        for ip in range(2):
            t = 116 + 4*(k % 2); k += 1
            items = []
            for ii in range(2):
                i = 2*ip + ii
                for h in range(2):
                    items.append((acc(c,i,6)+2*h, 32+8*6+2*h, 36+8*6+2*h, 16+2*i, t+2*ii+h))
            gelu8(items)
            for ii in range(2):
                i = 2*ip + ii
                e.i(f"s_mov_b32 s{S_T1}, {i*112*1024}\nbuffer_store_dwordx2 v[{t+2*ii}:{t+2*ii+1}], v6, s[{S_O}:{S_O+3}], s{S_T1} offen{SC}")
    c.epi = epi
    return c

def cfg_w2():
    c = Cfg(name="w2", NB=2, KT=2, S=5, unroll=2, rrate=2, K=3584, wstride=2048, korder='perm',
            VACC=128, VF=32, VA=8, e_mul=1, s_nb=None, swap=lambda j: False, xm=4, xn=8)
    ring = gemm_lds(c)[2]*c.S
    X0 = ring
    c.lds_total = X0 + 16384
    c.wcol_base = lambda e, s: e.i(f"s_lshl_b32 s{s}, s{S_NB}, 7")
    c.wcol_lane = lambda e, v, t: e.i(f"v_lshlrev_b32 v{v}, 6, v{v}")
    c.l_srds = [(S_M, KA_WS, WS_H1, SZ_H1), (S_W, KA_W2, 0, 3584*2048)]
    c.c_srds = [(S_O, KA_OUT, 0, 4*MB), (S_A, KA_WS, WS_H, 4*MB), (S_B, KA_B2, 0, 2048)]
    VH, VB = 96, 112
    def cpre(e):
        e.i(f"""s_lshl_b32 s{S_T0}, s{S_MB}, 3
        s_and_b32 s{S_T1}, s{S_WAVE}, 2
        s_lshl_b32 s{S_T1}, s{S_T1}, 1
        s_add_u32 s{S_T0}, s{S_T0}, s{S_T1}
        s_lshl_b32 s{S_T0}, s{S_T0}, 5
        s_lshl_b32 s{S_T1}, s{S_NB}, 1
        s_add_u32 s{S_T0}, s{S_T0}, s{S_T1}
        s_and_b32 s{S_T1}, s{S_WAVE}, 1
        s_add_u32 s{S_T0}, s{S_T0}, s{S_T1}
        s_lshl_b32 s{S_T0}, s{S_T0}, 10
        v_lshl_add_u32 v18, v0, 4, s{S_T0}""")
        for i in range(4):
            e.i(f"s_mov_b32 s{S_T1}, {i*32768}\nbuffer_load_dwordx4 v[{VH+4*i}:{VH+4*i+3}], v18, s[{S_A}:{S_A+3}], s{S_T1} offen")
        e.i(f"""s_lshl_b32 s{S_T0}, s{S_NB}, 7
        s_and_b32 s{S_T1}, s{S_WAVE}, 1
        s_lshl_b32 s{S_T1}, s{S_T1}, 6
        s_add_u32 s{S_T0}, s{S_T0}, s{S_T1}
        v_lshrrev_b32 v19, 4, v0
        v_lshl_add_u32 v19, v19, 3, s{S_T0}
        buffer_load_dwordx2 v[{VB}:{VB+1}], v19, s[{S_B}:{S_B+3}], 0 offen
        buffer_load_dwordx2 v[{VB+2}:{VB+3}], v19, s[{S_B}:{S_B+3}], 0 offen offset:32""")
    c.consumer_pre = cpre
    def epi(e, c):
        rm_lane_addr(e, 16, 17, X0)
        e.i("s_waitcnt vmcnt(0)")
        for q in range(4):
            e.i(f"v_lshlrev_b32 v{116+2*q}, 16, v{VB+q}\nv_and_b32 v{117+2*q}, 0xffff0000, v{VB+q}")
        for i in range(4):
            a, b = acc(c,i,0), acc(c,i,1)
            x = VH+4*i
            e.i(f"""v_lshlrev_b32 v20, 16, v{x}
            v_and_b32 v21, 0xffff0000, v{x}
            v_lshlrev_b32 v22, 16, v{x+1}
            v_and_b32 v23, 0xffff0000, v{x+1}
            v_lshlrev_b32 v24, 16, v{x+2}
            v_and_b32 v25, 0xffff0000, v{x+2}
            v_lshlrev_b32 v26, 16, v{x+3}
            v_and_b32 v27, 0xffff0000, v{x+3}
            v_pk_add_f32 v[{a}:{a+1}], v[{a}:{a+1}], v[116:117]
            v_pk_add_f32 v[{a+2}:{a+3}], v[{a+2}:{a+3}], v[118:119]
            v_pk_add_f32 v[{b}:{b+1}], v[{b}:{b+1}], v[120:121]
            v_pk_add_f32 v[{b+2}:{b+3}], v[{b+2}:{b+3}], v[122:123]
            v_pk_add_f32 v[{a}:{a+1}], v[{a}:{a+1}], v[20:21]
            v_pk_add_f32 v[{a+2}:{a+3}], v[{a+2}:{a+3}], v[22:23]
            v_pk_add_f32 v[{b}:{b+1}], v[{b}:{b+1}], v[24:25]
            v_pk_add_f32 v[{b+2}:{b+3}], v[{b+2}:{b+3}], v[26:27]""")
            t = 64 + 4*i
            e.i(f"""v_cvt_pk_bf16_f32 v{t}, v{a}, v{a+1}
            v_cvt_pk_bf16_f32 v{t+1}, v{a+2}, v{a+3}
            v_cvt_pk_bf16_f32 v{t+2}, v{b}, v{b+1}
            v_cvt_pk_bf16_f32 v{t+3}, v{b+2}, v{b+3}
            ds_write_b64 v16, v[{t}:{t+1}] offset:{i*2048}
            ds_write_b64 v17, v[{t+2}:{t+3}] offset:{i*2048}""")
        e.i("s_waitcnt lgkmcnt(0)\ns_barrier")
        e.i(f"""s_lshl_b32 s{S_T0}, s{S_WAVE}, 12
        s_add_u32 s{S_T0}, s{S_T0}, {X0}
        v_lshl_add_u32 v1, v0, 4, s{S_T0}""")
        for q in range(4):
            e.i(f"ds_read_b128 v[{32+4*q}:{35+4*q}], v1 offset:{q*1024}")
        e.i(f"""s_lshl_b32 s{S_T0}, s{S_MB}, 7
        s_lshl_b32 s{S_T1}, s{S_WAVE}, 5
        s_add_u32 s{S_T0}, s{S_T0}, s{S_T1}
        s_lshl_b32 s{S_T0}, s{S_T0}, 11
        s_lshl_b32 s{S_T1}, s{S_NB}, 7
        s_add_u32 s{S_T0}, s{S_T0}, s{S_T1}
        v_lshrrev_b32 v2, 3, v0
        v_lshl_add_u32 v2, v2, 11, s{S_T0}
        v_lshrrev_b32 v3, 4, v0
        v_and_b32 v4, 7, v0
        v_xor_b32 v3, v3, v4
        v_lshl_add_u32 v5, v3, 4, v2
        v_xor_b32 v3, 4, v3
        v_lshl_add_u32 v6, v3, 4, v2""")
        for q in range(4):
            e.i(f"s_waitcnt lgkmcnt({3-q})\ns_mov_b32 s{S_T1}, {q*16384}\nbuffer_store_dwordx4 v[{32+4*q}:{35+4*q}], v{5+(q&1)}, s[{S_O}:{S_O+3}], s{S_T1} offen")
    c.epi = epi
    return c
```

```python
from common import *
def gen_ln1(e, name, stamps=False):
    st = Stamps(stamps, 0)
    kernel_head(e, name)
    e.i(f"s_cmp_ge_u32 s2, 256\ns_cbranch_scc1 {name}_end")
    fx = load_srd(e, 8, KA_X, 0, 4*MB)
    fo = load_srd(e, 12, KA_WS, WS_XN, 4*MB)
    ff = load_srd(e, 16, KA_WS, WS_FL, SZ_FL)
    fq = load_srd(e, 28, KA_WQKV, 0, 1024*3072*2)
    st.init(e); st.stamp(e, "start")
    e.i("""v_and_b32 v1, 63, v0
    v_lshrrev_b32 v2, 6, v0
    v_lshrrev_b32 v3, 5, v1
    v_and_b32 v4, 31, v1
    v_lshl_add_u32 v5, v2, 1, v3
    s_lshl_b32 s3, s2, 3
    v_add_u32 v6, s3, v5
    v_lshlrev_b32 v6, 11, v6
    v_lshl_add_u32 v6, v4, 4, v6
    v_readfirstlane_b32 s24, v2
    s_waitcnt lgkmcnt(0)""")
    fx()
    for j in range(4):
        e.i(f"buffer_load_dwordx4 v[{16+4*j}:{19+4*j}], v6, s[8:11], 0 offen offset:{512*j}")
    fo(); ff(); fq()
    e.i("""s_lshr_b32 s4, s2, 3
    s_mul_i32 s4, s4, 384
    v_add_u32 v56, s4, v0
    v_mul_u32_u24 v57, 43691, v56
    v_lshrrev_b32 v57, 19, v57
    v_mul_u32_u24 v58, 12, v57
    v_sub_u32 v58, v56, v58
    v_lshrrev_b32 v59, 2, v58
    v_and_b32 v58, 3, v58
    v_mul_u32_u24 v57, 6144, v57
    v_lshl_add_u32 v57, v59, 11, v57
    v_lshl_add_u32 v57, v58, 7, v57
    s_and_b32 s4, s2, 7
    s_lshr_b32 s4, s4, 1
    s_lshl_b32 s4, s4, 9
    v_add_u32 v57, s4, v57
    buffer_load_dword v60, v57, s[28:31], 0 offen
    v_add_u32 v56, 256, v56
    v_mul_u32_u24 v58, 43691, v56
    v_lshrrev_b32 v58, 19, v58
    v_mul_u32_u24 v59, 12, v58
    v_sub_u32 v59, v56, v59
    v_lshrrev_b32 v61, 2, v59
    v_and_b32 v59, 3, v59
    v_mul_u32_u24 v58, 6144, v58
    v_lshl_add_u32 v58, v61, 11, v58
    v_lshl_add_u32 v58, v59, 7, v58
    v_add_u32 v58, s4, v58
    v_cmp_gt_u32 vcc, 128, v0
    s_nop 1
    v_cndmask_b32 v58, v57, v58, vcc
    buffer_load_dword v61, v58, s[28:31], 0 offen""")
    e.i(f"""s_lshl_b32 s4, s2, 10
    v_lshl_add_u32 v62, v0, 2, s4
    v_mov_b32 v63, 0
    buffer_store_dword v63, v62, s[16:19], 0 offen sc1""")
    assert SZ_FL == 256*1024
    e.i("s_waitcnt vmcnt(3)")
    for r in range(16):
        e.i(f"v_lshlrev_b32 v{96+2*r}, 16, v{16+r}\nv_and_b32 v{97+2*r}, 0xffff0000, v{16+r}")
    def allreduce32(v, t):
        e.i(f"""s_nop 1
        v_add_f32_dpp v{v}, v{v}, v{v} quad_perm:[1,0,3,2] row_mask:0xf bank_mask:0xf
        s_nop 1
        v_add_f32_dpp v{v}, v{v}, v{v} quad_perm:[2,3,0,1] row_mask:0xf bank_mask:0xf
        s_nop 1
        v_add_f32_dpp v{v}, v{v}, v{v} row_half_mirror row_mask:0xf bank_mask:0xf
        s_nop 1
        v_add_f32_dpp v{v}, v{v}, v{v} row_mirror row_mask:0xf bank_mask:0xf
        s_nop 1
        v_mov_b32 v{t}, v{v}
        s_nop 1
        v_permlane16_swap_b32 v{t}, v{v}
        s_nop 1
        v_add_f32 v{v}, v{t}, v{v}""")
    e.i("v_pk_add_f32 v[10:11], v[96:97], v[98:99]")
    for r in range(2, 16):
        e.i(f"v_pk_add_f32 v[10:11], v[10:11], v[{96+2*r}:{97+2*r}]")
    e.i("v_add_f32 v10, v10, v11")
    allreduce32(10, 11)
    e.i("v_mul_f32 v10, 0x3a800000, v10")
    e.i("v_mov_b32 v11, v10")
    for r in range(16):
        e.i(f"v_pk_add_f32 v[{96+2*r}:{97+2*r}], v[{96+2*r}:{97+2*r}], v[10:11] neg_lo:[0,1] neg_hi:[0,1]")
    e.i("v_pk_mul_f32 v[12:13], v[96:97], v[96:97]")
    for r in range(1, 16):
        e.i(f"v_pk_fma_f32 v[12:13], v[{96+2*r}:{97+2*r}], v[{96+2*r}:{97+2*r}], v[12:13]")
    e.i("v_add_f32 v12, v12, v13")
    allreduce32(12, 13)
    e.i("""v_mov_b32 v13, 0x3727c5ac
    v_fmac_f32 v13, 0x3a800000, v12
    v_rsq_f32 v12, v13
    s_nop 0
    v_mov_b32 v13, v12""")
    for r in range(16):
        e.i(f"v_pk_mul_f32 v[{96+2*r}:{97+2*r}], v[{96+2*r}:{97+2*r}], v[12:13]")
    for r in range(16):
        e.i(f"v_cvt_pk_bf16_f32 v{16+r}, v{96+2*r}, v{97+2*r}")
    e.i("""s_lshr_b32 s4, s2, 1
    s_lshl_b32 s4, s4, 15
    s_and_b32 s5, s2, 1
    s_lshl_b32 s5, s5, 7
    s_add_u32 s4, s4, s5
    v_lshl_add_u32 v14, v5, 4, s4
    v_lshrrev_b32 v15, 2, v4
    v_lshl_add_u32 v14, v15, 10, v14
    v_and_b32 v15, 3, v4
    v_lshl_add_u32 v14, v15, 8, v14""")
    for j in range(4):
        e.i(f"buffer_store_dwordx4 v[{16+4*j}:{19+4*j}], v14, s[12:15], 0 offen\nv_add_u32 v14, 8192, v14")
    if stamps:
        e.i("s_waitcnt vmcnt(0)")
        st.stamp(e, "end"); st.flush(e, 24)
    e.label(f"{name}_end")
    e.i("s_endpgm")
    kernel_desc(e, name, 128)
    return dict(name=name, grid=256, block=256, lds=0, vgpr=128, sidx=0, stamps=st.names)
```

```python
from common import *
from gemm import *
import gemm as G
import k_attn as A
from k_gemms import *

def gen_mega(e, name, stamps=False):
    st = Stamps(stamps, 1)
    Q, O, W1, W2 = cfg_qkv(), cfg_wo(), cfg_w1(), cfg_w2()
    kernel_head(e, name)
    e.i(f"s_cmp_ge_u32 s2, 256\ns_cbranch_scc1 {name}_end")
    ff = load_srd(e, S_FLP, KA_WS, WS_FL, SZ_FL)
    st.init(e); st.stamp(e, "start")
    e.i(f"""v_lshrrev_b32 v1, 6, v0
    v_and_b32 v0, 63, v0
    s_nop 0
    v_readfirstlane_b32 s{S_WAVE}, v1
    s_waitcnt lgkmcnt(0)""")
    ff()
    e.i(f"s_cmp_ge_u32 s{S_WAVE}, 4\ns_cbranch_scc1 L_stream")
    class NoSt:
        on = False
        def stamp(self, *a, **k): pass
    nost = NoSt()
    def done_barrier(): e.i("s_waitcnt vmcnt(0)\ns_barrier")
    emit_consumer(e, Q, Q.c_srds, Q.epi, st, dep_barrier=False)
    done_barrier()
    st.stamp(e, "qkv_done")
    e.label("C_att")
    A.emit_attn_setup(e, st)
    e.i("s_branch att_dep")
    e.label("C_wo")
    done_barrier()
    st.stamp(e, "att_done")
    emit_consumer(e, O, O.c_srds, O.epi, st)
    done_barrier()
    st.stamp(e, "wo_done")
    emit_consumer(e, W1, W1.c_srds, W1.epi, st)
    done_barrier()
    st.stamp(e, "w1_done")
    emit_consumer(e, W2, W2.c_srds, W2.epi, st, free_barrier=False)
    if stamps:
        e.i("s_waitcnt vmcnt(0)")
        st.stamp(e, "end"); st.flush(e, S_WAVE, 21)
    e.i("s_endpgm")
    e.label("L_stream")
    emit_loader(e, Q, Q.l_srds, tail_extra=Q.tail_extra)
    e.i("s_barrier")
    Q.cs_finish(e)
    done_barrier()
    def only4(fn, lab):
        e.i(f"s_cmp_lg_u32 s{S_WAVE}, 4\ns_cbranch_scc1 {lab}")
        fn()
        e.label(lab)
    only4(lambda: emit_signal(e, 0, S_NB, S_MB, G.S_T0), "L_s1")
    e.i("s_branch L_att")
    e.label("att_dep")
    e.i("s_barrier")
    st.stamp(e, "att_dep")
    A.emit_attn_main(e, st, "C_wo", "L_wo")
    e.label("L_att")
    e2 = E(); A.emit_attn_setup(e2, nost)
    e("\n".join(l.replace("att_pf", "attL_pf") for l in e2.l))
    def poll1():
        e.i(f"s_lshr_b32 s{G.S_T1}, s{A.S_HEAD}, 1")
        emit_poll(e, 0, G.S_T1, 16, G.S_T0, "L_p1")
    only4(poll1, "L_q1")
    e.i("s_branch att_dep")
    e.label("L_wo")
    def mid_att():
        e.i("s_barrier")
        def sig():
            A.attn_map(e)
            emit_signal(e, 1, A.S_QB, A.S_HEAD, G.S_T0)
            emit_map(e, O.xm, O.xn)
        only4(sig, "L_s2")
    def dep(T, shift, nprod, lab):
        def f():
            def p():
                if shift: e.i(f"s_lshr_b32 s{G.S_T1}, s{S_MB}, {shift}")
                else: e.i(f"s_mov_b32 s{G.S_T1}, s{S_MB}")
                emit_poll(e, T, G.S_T1, nprod, G.S_T2, lab)
            only4(p, lab + "_o")
            e.i("s_barrier")
        return f
    emit_loader(e, O, O.l_srds, mid=mid_att, dep=dep(1, 1, 32, "L_p2"))
    e.i("s_barrier")
    def mid_prev(prev, nint, T, lab):
        def f():
            for _ in range(nint): e.i("s_barrier")
            e.i("s_barrier")
            def sig():
                cur = (S_MB, S_NB)
                e.i(f"s_mov_b32 s48, s{S_MB}\ns_mov_b32 s49, s{S_NB}")
                emit_map(e, prev.xm, prev.xn)
                emit_signal(e, T, S_MB, S_NB, G.S_T0)
                e.i(f"s_mov_b32 s{S_MB}, s48\ns_mov_b32 s{S_NB}, s49")
            only4(sig, lab)
        return f
    emit_loader(e, W1, W1.l_srds, mid=mid_prev(O, 1, 2, "L_s3"), dep=dep(2, 0, 16, "L_p3"))
    e.i("s_barrier")
    emit_loader(e, W2, W2.l_srds, mid=mid_prev(W1, 0, 3, "L_s4"), dep=dep(3, 0, 16, "L_p4"))
    e.label(f"{name}_end")
    e.i("s_endpgm")
    kernel_desc(e, name, 256)
    lds = max(Q.lds_total, O.lds_total, W1.lds_total, W2.lds_total)
    return dict(name=name, grid=256, block=512, lds=lds, vgpr=256, sidx=1, stamps=st.names)
```

```python
import sys, os
sys.path.insert(0, os.path.dirname(os.path.abspath(__file__)))
from common import *
from k_ln1 import gen_ln1
from mega import gen_mega

def build(stamps=False):
    ks = []
    body = E()
    ks.append(gen_ln1(body, "ln1_kernel", stamps))
    ks.append(gen_mega(body, "main_kernel", stamps))
    ref = open("cdna_kernels/" + PREFIX + ".s.ref").read().split("\n")
    hdr = [l for l in ref if l.startswith(";") and "@launch" not in l and "Override launch" not in l and "grid=ceil" not in l]
    out = hdr[:]
    for k in ks:
        out.append(f"; @launch kernel={k['name']} grid=({k['grid']},1,1) block=({k['block']},1,1) lds={k['lds']}")
    out.append('.amdgcn_target "amdgcn-amd-amdhsa--gfx950"')
    out.append(".text")
    return "\n".join(out) + "\n" + body.text(), ks

if __name__ == "__main__":
    stamps = "--stamps" in sys.argv
    outp = [a for a in sys.argv[1:] if not a.startswith("--")]
    txt, ks = build(stamps)
    path = outp[0] if outp else "cdna_kernels/" + PREFIX + ".s"
    open(path, "w").write(txt)
    print(path, len(txt), "bytes")
    for k in ks: print(k)
    if "--co" in sys.argv:
        sys.path.insert(0, "dev")
        from asmlib import metadata, assemble
        co_s = path.replace(".s", "_dev.s")
        open(co_s, "w").write(txt + metadata([(k['name'], k['vgpr'], 102, k['block']) for k in ks]))
        assemble(co_s, path.replace(".s", ".co"))
        import json
        json.dump(ks, open(path.replace(".s", ".json"), "w"))
```

```python
from kg import *
import struct, math
KA_X, KA_WQKV, KA_WO, KA_BX, KA_W1, KA_B1, KA_W2, KA_B2, KA_OUT, KA_DBG, KA_WS = 0, 8, 16, 24, 32, 40, 48, 56, 64, 72, 80
MB = 1 << 20
WS_XN, WS_Q, WS_K, WS_V, WS_O, WS_H = 0, 4*MB, 8*MB, 12*MB, 16*MB, 20*MB
WS_H1 = 24*MB
WS_STAT = 40*MB
WS_CS1 = 41*MB
WS_FL = 42*MB
FLS = 128
FL_T = 16*32*FLS
SZ_FL = 4*FL_T
SZ_H1 = 2048*3584*2
PREFIX = "sequential_preLN__mha_block__dense_activation_gelu__prompt"
def f2u(x): return struct.unpack("<I", struct.pack("<f", x))[0]

S_WG, S_WAVE = 2, 3
S_FLP = 4
S_STAMP0 = 60

class Stamps:
    def __init__(self, on, kidx=0): self.on = on; self.k = kidx; self.n = 0; self.names = []
    def init(self, e):
        if self.on: e.i("s_load_dwordx2 s[56:57], s[0:1], %d" % KA_DBG)
    def stamp(self, e, name="", idx=None):
        if not self.on: return
        if idx is None:
            idx = self.n; self.n += 1; self.names.append(name)
        assert S_STAMP0 + 2*idx + 1 < 102
        e.i(f"s_memrealtime s[{S_STAMP0+2*idx}:{S_STAMP0+2*idx+1}]")
    def flush(self, e, swave, nmax=None):
        if not self.on: return
        e.i("s_waitcnt lgkmcnt(0)")
        e.i(f"""s_mov_b32 s58, 0x1000000
        s_mov_b32 s59, 0x00020000
        s_lshl_b32 s54, s2, 3
        s_add_u32 s54, s54, s{swave}
        s_lshl_b32 s54, s54, 7
        s_add_u32 s54, s54, {self.k*256*8*128}
        v_mov_b32 v2, s54""")
        for i in range(nmax or self.n):
            e.i(f"v_mov_b32 v{4+(i&3)}, s{S_STAMP0+2*i}\nbuffer_store_dword v{4+(i&3)}, v2, s[56:59], 0 offen offset:{4*i}")

def emit_signal(e, T, sgroup, sidx, tmp):
    e.i(f"""s_lshl_b32 s{tmp}, s{sgroup}, 5
    s_add_u32 s{tmp}, s{tmp}, s{sidx}
    s_mul_i32 s{tmp}, s{tmp}, {FLS}
    s_add_u32 s{tmp}, s{tmp}, {T*FL_T}
    v_mov_b32 v2, s{tmp}
    v_mov_b32 v3, 1
    s_mov_b64 s[50:51], exec
    s_mov_b64 exec, 1
    buffer_store_dword v3, v2, s[{S_FLP}:{S_FLP+3}], 0 offen sc1
    s_mov_b64 exec, s[50:51]""")

def emit_poll(e, T, sgroup, nprod, tmp, label):
    e.i(f"""s_lshl_b32 s{tmp}, s{sgroup}, 5
    s_mul_i32 s{tmp}, s{tmp}, {FLS}
    s_add_u32 s{tmp}, s{tmp}, {T*FL_T}
    v_min_u32 v2, {nprod-1}, v0
    v_mul_u32_u24 v2, {FLS}, v2
    v_add_u32 v2, s{tmp}, v2
    s_mov_b32 s{tmp}, 0x8000""")
    e.label(label)
    e.i(f"""buffer_load_dword v3, v2, s[{S_FLP}:{S_FLP+3}], 0 offen sc1
    s_sub_u32 s{tmp}, s{tmp}, 1
    s_cmp_eq_u32 s{tmp}, 0
    s_cbranch_scc1 {label}_x
    s_waitcnt vmcnt(0)
    v_cmp_ne_u32 vcc, 1, v3
    s_nop 4
    s_cbranch_vccnz {label}""")
    e.label(label + "_x")
    e.i("s_waitcnt vmcnt(0)")

def emit_code_prefetch(e, lab_from, lab_to, nlines_max, sreg, v, uid, backward=False):
    e.i(f"s_getpc_b64 s[{sreg}:{sreg+1}]")
    e.label(f"pc_{uid}")
    if backward:
        e.i(f"s_sub_u32 s{sreg}, s{sreg}, pc_{uid}-{lab_from}\ns_subb_u32 s{sreg+1}, s{sreg+1}, 0")
    else:
        e.i(f"s_add_u32 s{sreg}, s{sreg}, {lab_from}-pc_{uid}\ns_addc_u32 s{sreg+1}, s{sreg+1}, 0")
    e.i(f"v_lshlrev_b32 v{v}, 7, v0")
    n = (nlines_max + 63)//64
    for i in range(n):
        e.i(f"v_min_u32 v{v+1}, {lab_to}-{lab_from}-4, v{v}")
        e.i(f"global_load_dword v{v+2}, v{v+1}, s[{sreg}:{sreg+1}]")
        if i + 1 < n: e.i(f"v_add_u32 v{v}, 8192, v{v}")
```

```python
from common import *
import os
PF_CODE = os.environ.get('PFC', '1') == '1'
def gen_ln1(e, name, stamps=False):
    st = Stamps(stamps, 0)
    kernel_head(e, name)
    e.i(f"s_cmp_ge_u32 s2, 256\ns_cbranch_scc1 {name}_end")
    fx = load_srd(e, 8, KA_X, 0, 4*MB)
    fo = load_srd(e, 12, KA_WS, WS_XN, 4*MB)
    ff = load_srd(e, 16, KA_WS, WS_FL, SZ_FL)
    fq = load_srd(e, 28, KA_WQKV, 0, 1024*3072*2)
    st.init(e); st.stamp(e, "start")
    e.i("""v_and_b32 v1, 63, v0
    v_lshrrev_b32 v2, 6, v0
    v_lshrrev_b32 v3, 5, v1
    v_and_b32 v4, 31, v1
    v_lshl_add_u32 v5, v2, 1, v3
    s_lshl_b32 s3, s2, 3
    v_add_u32 v6, s3, v5
    v_lshlrev_b32 v6, 11, v6
    v_lshl_add_u32 v6, v4, 4, v6
    v_readfirstlane_b32 s24, v2
    s_waitcnt lgkmcnt(0)""")
    fx()
    for j in range(4):
        e.i(f"buffer_load_dwordx4 v[{16+4*j}:{19+4*j}], v6, s[8:11], 0 offen offset:{512*j}")
    fo(); ff(); fq()
    e.i("""s_lshr_b32 s4, s2, 3
    s_mul_i32 s4, s4, 384
    v_add_u32 v56, s4, v0
    v_mul_u32_u24 v57, 43691, v56
    v_lshrrev_b32 v57, 19, v57
    v_mul_u32_u24 v58, 12, v57
    v_sub_u32 v58, v56, v58
    v_lshrrev_b32 v59, 2, v58
    v_and_b32 v58, 3, v58
    v_mul_u32_u24 v57, 6144, v57
    v_lshl_add_u32 v57, v59, 11, v57
    v_lshl_add_u32 v57, v58, 7, v57
    s_and_b32 s4, s2, 7
    s_lshr_b32 s4, s4, 1
    s_lshl_b32 s4, s4, 9
    v_add_u32 v57, s4, v57
    buffer_load_dword v60, v57, s[28:31], 0 offen
    v_add_u32 v56, 256, v56
    v_mul_u32_u24 v58, 43691, v56
    v_lshrrev_b32 v58, 19, v58
    v_mul_u32_u24 v59, 12, v58
    v_sub_u32 v59, v56, v59
    v_lshrrev_b32 v61, 2, v59
    v_and_b32 v59, 3, v59
    v_mul_u32_u24 v58, 6144, v58
    v_lshl_add_u32 v58, v61, 11, v58
    v_lshl_add_u32 v58, v59, 7, v58
    v_add_u32 v58, s4, v58
    v_cmp_gt_u32 vcc, 128, v0
    s_nop 1
    v_cndmask_b32 v58, v57, v58, vcc
    buffer_load_dword v61, v58, s[28:31], 0 offen""")
    e.i(f"""s_lshl_b32 s4, s2, 10
    v_lshl_add_u32 v62, v0, 2, s4
    v_mov_b32 v63, 0
    buffer_store_dword v63, v62, s[16:19], 0 offen sc1""")
    assert SZ_FL == 256*1024
    e.i("s_waitcnt vmcnt(3)")
    for r in range(16):
        e.i(f"v_lshlrev_b32 v{96+2*r}, 16, v{16+r}\nv_and_b32 v{97+2*r}, 0xffff0000, v{16+r}")
    def allreduce32(v, t):
        e.i(f"""s_nop 1
        v_add_f32_dpp v{v}, v{v}, v{v} quad_perm:[1,0,3,2] row_mask:0xf bank_mask:0xf
        s_nop 1
        v_add_f32_dpp v{v}, v{v}, v{v} quad_perm:[2,3,0,1] row_mask:0xf bank_mask:0xf
        s_nop 1
        v_add_f32_dpp v{v}, v{v}, v{v} row_half_mirror row_mask:0xf bank_mask:0xf
        s_nop 1
        v_add_f32_dpp v{v}, v{v}, v{v} row_mirror row_mask:0xf bank_mask:0xf
        s_nop 1
        v_mov_b32 v{t}, v{v}
        s_nop 1
        v_permlane16_swap_b32 v{t}, v{v}
        s_nop 1
        v_add_f32 v{v}, v{t}, v{v}""")
    e.i("v_pk_add_f32 v[10:11], v[96:97], v[98:99]")
    for r in range(2, 16):
        e.i(f"v_pk_add_f32 v[10:11], v[10:11], v[{96+2*r}:{97+2*r}]")
    e.i("v_add_f32 v10, v10, v11")
    allreduce32(10, 11)
    e.i("v_mul_f32 v10, 0x3a800000, v10")
    e.i("v_mov_b32 v11, v10")
    for r in range(16):
        e.i(f"v_pk_add_f32 v[{96+2*r}:{97+2*r}], v[{96+2*r}:{97+2*r}], v[10:11] neg_lo:[0,1] neg_hi:[0,1]")
    e.i("v_pk_mul_f32 v[12:13], v[96:97], v[96:97]")
    for r in range(1, 16):
        e.i(f"v_pk_fma_f32 v[12:13], v[{96+2*r}:{97+2*r}], v[{96+2*r}:{97+2*r}], v[12:13]")
    e.i("v_add_f32 v12, v12, v13")
    allreduce32(12, 13)
    e.i("""v_mov_b32 v13, 0x3727c5ac
    v_fmac_f32 v13, 0x3a800000, v12
    v_rsq_f32 v12, v13
    s_nop 0
    v_mov_b32 v13, v12""")
    for r in range(16):
        e.i(f"v_pk_mul_f32 v[{96+2*r}:{97+2*r}], v[{96+2*r}:{97+2*r}], v[12:13]")
    for r in range(16):
        e.i(f"v_cvt_pk_bf16_f32 v{16+r}, v{96+2*r}, v{97+2*r}")
    e.i("""s_lshr_b32 s4, s2, 1
    s_lshl_b32 s4, s4, 15
    s_and_b32 s5, s2, 1
    s_lshl_b32 s5, s5, 7
    s_add_u32 s4, s4, s5
    v_lshl_add_u32 v14, v5, 4, s4
    v_lshrrev_b32 v15, 2, v4
    v_lshl_add_u32 v14, v15, 10, v14
    v_and_b32 v15, 3, v4
    v_lshl_add_u32 v14, v15, 8, v14""")
    for j in range(4):
        e.i(f"buffer_store_dwordx4 v[{16+4*j}:{19+4*j}], v14, s[12:15], 0 offen\nv_add_u32 v14, 8192, v14")
    if PF_CODE:
        e.i(f"s_cmp_lg_u32 s24, 3\ns_cbranch_scc1 {name}_ncp")
        e.i("v_and_b32 v0, 63, v0")
        emit_code_prefetch(e, "main_kernel", "main_kernel_codeend", 256, 32, 64, "k0")
        e.i("v_or_b32 v0, 192, v0")
        e.label(f"{name}_ncp")
    if stamps:
        e.i("s_waitcnt vmcnt(0)")
        st.stamp(e, "end"); st.flush(e, 24)
    e.label(f"{name}_end")
    e.i("s_endpgm")
    kernel_desc(e, name, 128)
    return dict(name=name, grid=256, block=256, lds=0, vgpr=128, sidx=0, stamps=st.names)
```

```python
from common import *
from gemm import *
import gemm as G
import k_attn as A
import os
PFC = os.environ.get('PFC', '1') == '1'
from k_gemms import *

def gen_mega(e, name, stamps=False):
    st = Stamps(stamps, 1)
    Q, O, W1, W2 = cfg_qkv(), cfg_wo(), cfg_w1(), cfg_w2()
    kernel_head(e, name)
    e.i(f"s_cmp_ge_u32 s2, 256\ns_cbranch_scc1 {name}_end")
    ff = load_srd(e, S_FLP, KA_WS, WS_FL, SZ_FL)
    st.init(e); st.stamp(e, "start")
    e.i(f"""v_lshrrev_b32 v1, 6, v0
    v_and_b32 v0, 63, v0
    s_nop 0
    v_readfirstlane_b32 s{S_WAVE}, v1
    s_waitcnt lgkmcnt(0)""")
    ff()
    e.i(f"s_cmp_ge_u32 s{S_WAVE}, 4\ns_cbranch_scc1 L_stream")
    class NoSt:
        on = False
        def stamp(self, *a, **k): pass
    nost = NoSt()
    def done_barrier(): e.i("s_waitcnt vmcnt(0)\ns_barrier")
    emit_consumer(e, Q, Q.c_srds, Q.epi, st, dep_barrier=False)
    done_barrier()
    st.stamp(e, "qkv_done")
    e.label("C_att")
    A.emit_attn_setup(e, st)
    e.i("s_branch att_dep")
    e.label("C_wo")
    done_barrier()
    st.stamp(e, "att_done")
    e.label("C_wo2")
    emit_consumer(e, O, O.c_srds, O.epi, st)
    done_barrier()
    st.stamp(e, "wo_done")
    e.label("C_w1")
    emit_consumer(e, W1, W1.c_srds, W1.epi, st)
    done_barrier()
    st.stamp(e, "w1_done")
    e.label("C_w2")
    emit_consumer(e, W2, W2.c_srds, W2.epi, st, free_barrier=False)
    if stamps:
        e.i("s_waitcnt vmcnt(0)")
        st.stamp(e, "end"); st.flush(e, S_WAVE, 21)
    e.i("s_endpgm")
    e.label("L_stream")
    def pfc(a, b, n, uid, v=57):
        if not PFC: return
        e.i(f"s_cmp_lg_u32 s{S_WAVE}, 5\ns_cbranch_scc1 npf_{uid}")
        emit_code_prefetch(e, a, b, n, 52, v, uid, backward=True)
        e.label(f"npf_{uid}")
    emit_loader(e, Q, Q.l_srds, tail_extra=Q.tail_extra)
    e.i("s_barrier")
    pfc("C_att", "C_wo2", 16, "a1")
    if PFC:
        e.i(f"s_cmp_lg_u32 s{S_WAVE}, 6\ns_cbranch_scc1 npf_a2")
        emit_code_prefetch(e, "att_dep", "att_slow", 64, 52, 57, "a2", backward=False)
        e.label("npf_a2")
    Q.cs_finish(e)
    done_barrier()
    def only4(fn, lab):
        e.i(f"s_cmp_lg_u32 s{S_WAVE}, 4\ns_cbranch_scc1 {lab}")
        fn()
        e.label(lab)
    only4(lambda: emit_signal(e, 0, S_NB, S_MB, G.S_T0), "L_s1")
    e.i("s_branch L_att")
    e.label("att_dep")
    e.i("s_barrier")
    st.stamp(e, "att_dep")
    A.emit_attn_main(e, st, "C_wo", "L_wo")
    e.label("L_att")
    e2 = E(); A.emit_attn_setup(e2, nost)
    e("\n".join(l.replace("att_pf", "attL_pf") for l in e2.l))
    pfc("C_wo", "C_w1", 64, "wo", v=246)
    def poll1():
        e.i(f"s_lshr_b32 s{G.S_T1}, s{A.S_HEAD}, 1")
        emit_poll(e, 0, G.S_T1, 16, G.S_T0, "L_p1")
    only4(poll1, "L_q1")
    e.i("s_branch att_dep")
    e.label("L_wo")
    def mid_att():
        e.i("s_barrier")
        def sig():
            A.attn_map(e)
            emit_signal(e, 1, A.S_QB, A.S_HEAD, G.S_T0)
            emit_map(e, O.xm, O.xn)
        only4(sig, "L_s2")
    def dep(T, shift, nprod, lab):
        def f():
            def p():
                if shift: e.i(f"s_lshr_b32 s{G.S_T1}, s{S_MB}, {shift}")
                else: e.i(f"s_mov_b32 s{G.S_T1}, s{S_MB}")
                emit_poll(e, T, G.S_T1, nprod, G.S_T2, lab)
            only4(p, lab + "_o")
            e.i("s_barrier")
        return f
    pfc("C_w1", "C_w2", 128, "w1")
    emit_loader(e, O, O.l_srds, mid=mid_att, dep=dep(1, 1, 32, "L_p2"))
    e.i("s_barrier")
    def mid_prev(prev, nint, T, lab):
        def f():
            for _ in range(nint): e.i("s_barrier")
            e.i("s_barrier")
            def sig():
                cur = (S_MB, S_NB)
                e.i(f"s_mov_b32 s48, s{S_MB}\ns_mov_b32 s49, s{S_NB}")
                emit_map(e, prev.xm, prev.xn)
                emit_signal(e, T, S_MB, S_NB, G.S_T0)
                e.i(f"s_mov_b32 s{S_MB}, s48\ns_mov_b32 s{S_NB}, s49")
            only4(sig, lab)
        return f
    pfc("C_w2", "L_stream", 64, "w2")
    emit_loader(e, W1, W1.l_srds, mid=mid_prev(O, 1, 2, "L_s3"), dep=dep(2, 0, 16, "L_p3"))
    e.i("s_barrier")
    emit_loader(e, W2, W2.l_srds, mid=mid_prev(W1, 0, 3, "L_s4"), dep=dep(3, 0, 16, "L_p4"))
    e.label(f"{name}_end")
    e.i("s_endpgm")
    e.label(f"{name}_codeend")
    kernel_desc(e, name, 256)
    lds = max(Q.lds_total, O.lds_total, W1.lds_total, W2.lds_total)
    return dict(name=name, grid=256, block=512, lds=lds, vgpr=256, sidx=1, stamps=st.names)
```

```python
from kg import *
import struct, math
KA_X, KA_WQKV, KA_WO, KA_BX, KA_W1, KA_B1, KA_W2, KA_B2, KA_OUT, KA_DBG, KA_WS = 0, 8, 16, 24, 32, 40, 48, 56, 64, 72, 80
MB = 1 << 20
import os
WS0 = int(os.environ.get('WS0', '0'))*MB
WS_XN, WS_Q, WS_K, WS_V, WS_O, WS_H = WS0, WS0+4*MB, WS0+8*MB, WS0+12*MB, WS0+16*MB, WS0+20*MB
WS_H1 = WS0+24*MB
WS_STAT = WS0+40*MB
WS_CS1 = WS0+41*MB
WS_FL = WS0+42*MB
FLS = 128
FL_T = 16*32*FLS
FL_X = 4*FL_T
SZ_FL = 8*FL_T
WS_XB = WS0+44*MB
SZ_H1 = 2048*3584*2
PREFIX = "sequential_preLN__mha_block__dense_activation_gelu__prompt"
def f2u(x): return struct.unpack("<I", struct.pack("<f", x))[0]

S_WG, S_WAVE = 2, 3
S_FLP = 4
S_STAMP0 = 60

class Stamps:
    def __init__(self, on, kidx=0): self.on = on; self.k = kidx; self.n = 0; self.names = []
    def init(self, e):
        if self.on: e.i("s_load_dwordx2 s[56:57], s[0:1], %d" % KA_DBG)
    def stamp(self, e, name="", idx=None):
        if not self.on: return
        if idx is None:
            idx = self.n; self.n += 1; self.names.append(name)
        assert S_STAMP0 + 2*idx + 1 < 102
        e.i(f"s_memrealtime s[{S_STAMP0+2*idx}:{S_STAMP0+2*idx+1}]")
    def flush(self, e, swave, nmax=None):
        if not self.on: return
        e.i("s_waitcnt lgkmcnt(0)")
        e.i(f"""s_mov_b32 s58, 0x1000000
        s_mov_b32 s59, 0x00020000
        s_lshl_b32 s54, s2, 3
        s_add_u32 s54, s54, s{swave}
        s_lshl_b32 s54, s54, 7
        s_add_u32 s54, s54, {self.k*256*8*128}
        v_mov_b32 v2, s54""")
        for i in range(nmax or self.n):
            e.i(f"v_mov_b32 v{4+(i&3)}, s{S_STAMP0+2*i}\nbuffer_store_dword v{4+(i&3)}, v2, s[56:59], 0 offen offset:{4*i}")

def emit_signal(e, T, sgroup, sidx, tmp):
    e.i(f"""s_lshl_b32 s{tmp}, s{sgroup}, 5
    s_add_u32 s{tmp}, s{tmp}, s{sidx}
    s_mul_i32 s{tmp}, s{tmp}, {FLS}
    s_add_u32 s{tmp}, s{tmp}, {T*FL_T}
    v_mov_b32 v2, s{tmp}
    v_mov_b32 v3, 1
    s_mov_b64 s[50:51], exec
    s_mov_b64 exec, 1
    buffer_store_dword v3, v2, s[{S_FLP}:{S_FLP+3}], 0 offen sc1
    s_mov_b64 exec, s[50:51]""")

def emit_poll(e, T, sgroup, nprod, tmp, label):
    e.i(f"""s_lshl_b32 s{tmp}, s{sgroup}, 5
    s_mul_i32 s{tmp}, s{tmp}, {FLS}
    s_add_u32 s{tmp}, s{tmp}, {T*FL_T}
    v_min_u32 v2, {nprod-1}, v0
    v_mul_u32_u24 v2, {FLS}, v2
    v_add_u32 v2, s{tmp}, v2
    s_mov_b32 s{tmp}, 0x8000""")
    e.label(label)
    e.i(f"""buffer_load_dword v3, v2, s[{S_FLP}:{S_FLP+3}], 0 offen sc1
    s_sub_u32 s{tmp}, s{tmp}, 1
    s_cmp_eq_u32 s{tmp}, 0
    s_cbranch_scc1 {label}_x
    s_waitcnt vmcnt(0)
    v_cmp_ne_u32 vcc, 1, v3
    s_nop 4
    s_cbranch_vccnz {label}""")
    e.label(label + "_x")
    e.i("s_waitcnt vmcnt(0)")

def emit_code_prefetch(e, lab_from, lab_to, nlines_max, sreg, v, uid, backward=False):
    e.i(f"s_getpc_b64 s[{sreg}:{sreg+1}]")
    e.label(f"pc_{uid}")
    if backward:
        e.i(f"s_sub_u32 s{sreg}, s{sreg}, pc_{uid}-{lab_from}\ns_subb_u32 s{sreg+1}, s{sreg+1}, 0")
    else:
        e.i(f"s_add_u32 s{sreg}, s{sreg}, {lab_from}-pc_{uid}\ns_addc_u32 s{sreg+1}, s{sreg+1}, 0")
    e.i(f"v_lshlrev_b32 v{v}, 7, v0")
    n = (nlines_max + 63)//64
    for i in range(n):
        e.i(f"v_min_u32 v{v+1}, {lab_to}-{lab_from}-4, v{v}")
        e.i(f"global_load_dword v{v+2}, v{v+1}, s[{sreg}:{sreg+1}]")
        if i + 1 < n: e.i(f"v_add_u32 v{v}, 8192, v{v}")
```

```python
from common import *

class Cfg:
    def __init__(s, **k): s.__dict__.update(k)

S_M, S_W = 8, 12
S_MB, S_NB, S_SLOT, S_CNT, S_MT, S_WT, S_T0, S_T1, S_T2, S_T3, S_T4 = 37, 38, 39, 40, 41, 42, 43, 44, 45, 46, 47
NL = 4

def gemm_lds(c):
    mbytes = 8*c.KT*1024
    wbytes = c.KT*2*c.NB*1024
    return mbytes, wbytes, mbytes + wbytes

def emit_map(e, xm, xn):
    gm = 16//xm
    e.i(f"""s_and_b32 s{S_T0}, s2, 7
    s_lshr_b32 s{S_T1}, s2, 3
    s_and_b32 s{S_MB}, s{S_T0}, {gm-1}
    s_mul_i32 s{S_MB}, s{S_MB}, {xm}
    s_and_b32 s{S_T2}, s{S_T1}, {xm-1}
    s_add_u32 s{S_MB}, s{S_MB}, s{S_T2}
    s_lshr_b32 s{S_NB}, s{S_T0}, {gm.bit_length()-1}
    s_mul_i32 s{S_NB}, s{S_NB}, {xn}
    s_lshr_b32 s{S_T2}, s{S_T1}, {xm.bit_length()-1}
    s_add_u32 s{S_NB}, s{S_NB}, s{S_T2}""")

S_KH = 36
def do_map(e, c):
    if getattr(c, 'map', None): c.map(e)
    else: emit_map(e, c.xm, c.xn)

def emit_loader(e, c, srds, mid=None, dep=None, tail_extra=None):
    NB, KT, S = c.NB, c.KT, c.S
    NT = c.K//(32*KT)
    mbytes, wbytes, stage = gemm_lds(c)
    MPW = 8//NL
    IW = KT*2*NB//NL
    assert (KT*2*NB) % NL == 0 and KT <= 4
    MI = MPW*KT
    IPW = MI + IW
    NKS = getattr(c, 'NKS', c.K//32)
    n = c.name
    e.c(f"---- loader {n}")
    fx = [load_srd(e, s, ka, add, sz) for (s, ka, add, sz) in srds]
    do_map(e, c)
    e.i(f"s_sub_u32 s{S_T0}, s{S_WAVE}, 4")
    e.i(f"""s_lshl_b32 s{S_T1}, s{S_MB}, 3
    s_mul_i32 s{S_T2}, s{S_T0}, {MPW}
    s_add_u32 s{S_T1}, s{S_T1}, s{S_T2}
    s_mul_i32 s{S_T1}, s{S_T1}, {NKS*1024}
    v_lshl_add_u32 v8, v0, 4, s{S_T1}""")
    VMA = 8
    for i in range(1, MPW):
        e.i(f"v_add_u32 v{VMA+i}, {i*NKS*1024}, v8")
    VW = VMA + MPW
    M, sh = magic_div(NB, 8*KT*NB)
    e.i(f"""v_lshrrev_b32 v40, 4, v0
    s_mul_i32 s{S_T1}, s{S_T0}, {4*IW}
    v_add_u32 v40, s{S_T1}, v40
    v_bfe_u32 v41, v0, 2, 2
    v_and_b32 v42, 3, v0
    s_mov_b32 s{S_T2}, {c.wstride}""")
    c.wcol_base(e, S_T1)
    swzbit = 1 if c.korder == 'natural' else 0
    for i in range(IW):
        e.i(f"""v_add_u32 v43, {4*i}, v40
        v_mul_u32_u24 v44, {M}, v43
        v_lshrrev_b32 v44, {sh}, v44
        v_mul_u32_u24 v45, {NB}, v44
        v_sub_u32 v45, v43, v45
        v_bfe_u32 v46, v44, {swzbit}, 1
        v_lshlrev_b32 v46, 1, v46
        v_xor_b32 v46, v46, v42
        v_lshl_add_u32 v46, v46, 4, s{S_T1}
        v_lshl_add_u32 v44, v44, 2, v41
        v_mul_lo_u32 v44, v44, s{S_T2}""")
        c.wcol_lane(e, 45, 47)
        e.i(f"v_add3_u32 v{VW+i}, v44, v45, v46")
    e.i(f"""s_mul_i32 s{S_T3}, s{S_T0}, {MPW*KT*1024}
    s_mul_i32 s{S_T4}, s{S_T0}, {IW*1024}
    s_add_u32 s{S_T4}, s{S_T4}, {mbytes}
    s_mov_b32 s{S_MT}, 0
    s_mov_b32 s{S_WT}, 0""")
    if getattr(c, 'splitk', False):
        e.i(f"s_mul_i32 s{S_MT}, s{S_KH}, {(c.K//32)*1024}\ns_mul_i32 s{S_WT}, s{S_KH}, {c.K*c.wstride}")
    e.i("s_waitcnt lgkmcnt(0)")
    for f in fx: f()
    if getattr(c, 'loader_pre', None): c.loader_pre(e)
    def issue_m(slot):
        e.i(f"s_add_u32 m0, {slot}, s{S_T3}")
        for i in range(MPW):
            if i: e.i(f"s_add_u32 m0, m0, {KT*1024}")
            e.i("s_nop 0")
            for j in range(KT):
                e.i(f"buffer_load_dwordx4 v{VMA+i}, s[{S_M}:{S_M+3}], s{S_MT} offen offset:{j*1024} lds")
        e.i(f"s_add_u32 s{S_MT}, s{S_MT}, {KT*1024}")
    def issue_w(slot):
        e.i(f"s_add_u32 m0, {slot}, s{S_T4}")
        for i in range(IW):
            if i: e.i(f"s_add_u32 m0, m0, 1024")
            e.i("s_nop 0")
            e.i(f"buffer_load_dwordx4 v{VW+i}, s[{S_W}:{S_W+3}], s{S_WT} offen lds")
        e.i(f"s_add_u32 s{S_WT}, s{S_WT}, {32*KT*c.wstride}")
    def adv():
        e.i(f"""s_add_u32 s{S_SLOT}, s{S_SLOT}, {stage}
        s_cmp_eq_u32 s{S_SLOT}, {S*stage}
        s_cselect_b32 s{S_SLOT}, 0, s{S_SLOT}""")
    D = S - 1
    def loop(cnt, body, lab):
        e.i(f"s_mov_b32 s{S_CNT}, {cnt}")
        e.label(lab); body()
        e.i(f"s_sub_u32 s{S_CNT}, s{S_CNT}, 1\ns_cmp_lg_u32 s{S_CNT}, 0\ns_cbranch_scc1 {lab}")
    if dep is None:
        e.i(f"s_mov_b32 s{S_SLOT}, 0")
        loop(D, lambda: (issue_m(f"s{S_SLOT}"), issue_w(f"s{S_SLOT}"), adv()), f"{n}_lpro")
        first = [(D-1)*IPW]*0
        t0 = 0
    else:
        e.i(f"s_mov_b32 s{S_SLOT}, 0")
        loop(D, lambda: (issue_w(f"s{S_SLOT}"), e.i(f"s_add_u32 s{S_SLOT}, s{S_SLOT}, {stage}")), f"{n}_lprw")
        if mid: mid()
        dep()
        e.i(f"s_mov_b32 s{S_SLOT}, 0")
        loop(D, lambda: (issue_m(f"s{S_SLOT}"), e.i(f"s_add_u32 s{S_SLOT}, s{S_SLOT}, {stage}")), f"{n}_lprm")
        for t in range(D):
            e.i(f"s_waitcnt vmcnt({(D-1-t)*MI + t*IPW})\ns_barrier")
            issue_m(f"s{S_SLOT}"); issue_w(f"s{S_SLOT}"); adv()
        t0 = D
    lm = f"{n}_lmain"
    loop(NT-D-t0, lambda: (e.i(f"s_waitcnt vmcnt({(D-1)*IPW})\ns_barrier"), issue_m(f"s{S_SLOT}"), issue_w(f"s{S_SLOT}"), adv()), lm)
    nx = 0
    if tail_extra:
        nx = tail_extra[0]; tail_extra[1](e)
    for i in range(D):
        e.i(f"s_waitcnt vmcnt({(D-1-i)*IPW + nx})\ns_barrier")
    assert D*IPW + nx <= 63, D*IPW

def acc(c, i, j): return c.VACC + (j*4 + i)*4

def emit_consumer(e, c, srds, epilogue, st, dep_barrier=True, free_barrier=True):
    NB, KT, S = c.NB, c.KT, c.S
    NT = c.K//(32*KT)
    mbytes, wbytes, stage = gemm_lds(c)
    n = c.name
    SETSZ = 16 + 4*NB
    def mreg(p, i): return c.VF + p*SETSZ + 4*i
    def wreg(p, j): return c.VF + p*SETSZ + 16 + 4*j
    VM, VE, VO, VS = c.VA, c.VA+1, c.VA+2, c.VA+3
    VMC, VEC, VOC, VSC = c.VA+4, c.VA+5, c.VA+6, c.VA+7
    mrot = getattr(c, 'splitk', False)
    e.c(f"---- consumer {n}")
    fx = [load_srd(e, s, ka, add, sz) for (s, ka, add, sz) in srds]
    do_map(e, c)
    if c.korder == 'natural':  gterm = f"v_mul_u32_u24 v{VE}, {2*NB*256}, v1"; rho = NB*256
    elif c.korder == 'perm':   gterm = f"v_mul_u32_u24 v{VE}, {NB*256}, v1"; rho = 4*NB*256
    else:
        gterm = f"v_lshrrev_b32 v2, 1, v1\nv_and_b32 v3, 1, v1\nv_lshl_add_u32 v2, v2, 2, v3\nv_mul_u32_u24 v{VE}, {NB*256}, v2"; rho = 2*NB*256
    e.i(f"""s_lshr_b32 s{S_T0}, s{S_WAVE}, 1
    s_mul_i32 s{S_T0}, s{S_T0}, {4*KT*1024}
    v_lshl_add_u32 v{VM}, v0, 4, s{S_T0}
    v_lshrrev_b32 v1, 4, v0
    {gterm}
    v_bfe_u32 v1, v0, 2, 2
    v_lshl_add_u32 v{VE}, v1, 6, v{VE}
    v_and_b32 v1, 3, v0
    v_lshl_add_u32 v{VE}, v1, 3, v{VE}
    v_add_u32 v{VE}, {mbytes}, v{VE}
    v_bfe_u32 v1, v0, 4, 1
    v_lshlrev_b32 v1, 5, v1
    s_and_b32 s{S_T0}, s{S_WAVE}, 1""")
    if c.s_nb is not None:
        e.i(f"""s_lshl_b32 s{S_T1}, s{S_T0}, 5
        v_xor_b32 v2, s{S_T1}, v1
        v_add_u32 v2, {c.s_nb*256}, v2
        v_add_u32 v{VS}, v{VE}, v2""")
    e.i(f"""s_mul_i32 s{S_T1}, s{S_T0}, {c.e_mul*256}
    v_xor_b32 v2, 32, v1
    v_add3_u32 v{VO}, v{VE}, v2, s{S_T1}
    v_add3_u32 v{VE}, v{VE}, v1, s{S_T1}""")
    if mrot:
        assert c.s_nb is None
        e.i(f"""s_mul_i32 s{S_T1}, s{S_KH}, {2*KT*1024}
        s_sub_u32 s{S_T2}, {2*KT*1024}, s{S_T1}
        v_add_u32 v{VS}, s{S_T2}, v{VM}
        v_add_u32 v{VM}, s{S_T1}, v{VM}""")
    z = c.VF
    e.i("\n".join(f"v_mov_b32 v{z+i}, 0" for i in range(4)))
    e.i("s_nop 1")
    for b in range(NB):
        a = c.VACC + 16*b
        e.i(f"v_mfma_f32_32x32x16_bf16 v[{a}:{a+15}], v[{z}:{z+3}], v[{z}:{z+3}], 0")
    e.i("s_waitcnt lgkmcnt(0)")
    for f in fx: f()
    if getattr(c, 'consumer_pre0', None): c.consumer_pre0(e)
    if dep_barrier: e.i("s_barrier")
    st.stamp(e, n + "_dep")
    if getattr(c, 'consumer_pre', None): c.consumer_pre(e)
    e.i(f"s_mov_b32 s{S_SLOT}, 0")
    def reads(p, ks):
        if mrot: mm = [f"ds_read_b128 v[{mreg(p,i)}:{mreg(p,i)+3}], v{VMC if i < 2 else VSC} offset:{((i&1)*KT+ks)*1024}" for i in range(4)]
        else: mm = [f"ds_read_b128 v[{mreg(p,i)}:{mreg(p,i)+3}], v{VMC} offset:{(i*KT+ks)*1024}" for i in range(4)]
        ww = []
        for j in range(NB):
            w = wreg(p, j)
            if c.s_nb is not None and j == NB-1: va, o = VSC, 0
            else: va, o = (VEC if j % 2 == 0 else VOC), (j//2)*256
            o0 = 8*ks*NB*256 + o
            ww.append(f"ds_read_b64_tr_b16 v[{w}:{w+1}], v{va} offset:{o0}")
            ww.append(f"ds_read_b64_tr_b16 v[{w+2}:{w+3}], v{va} offset:{o0 + rho}")
        return mm + ww
    def mfma(p, i, j):
        a = acc(c, i, j)
        w = wreg(p, j); m = mreg(p, i)
        if c.swap(j):
            return f"v_mfma_f32_16x16x32_bf16 v[{a}:{a+3}], v[{m}:{m+3}], v[{w}:{w+3}], v[{a}:{a+3}]"
        return f"v_mfma_f32_16x16x32_bf16 v[{a}:{a+3}], v[{w}:{w+3}], v[{m}:{m+3}], v[{a}:{a+3}]"
    def step(pm, ks, with_mfma=True, with_reads=True, pre=None):
        pr = pm ^ 1
        rs = reads(pr, ks) if with_reads else []
        if with_mfma: e.i("s_waitcnt lgkmcnt(0)")
        if pre: pre()
        for j in range(NB):
            for i in range(4):
                if with_mfma: e.i(mfma(pm, i, j))
                k = c.rrate if with_mfma else 100
                for _ in range(k):
                    if rs: e.i(rs.pop(0))
        assert not rs
    def newslot():
        e.i(f"v_add_u32 v{VMC}, s{S_SLOT}, v{VM}\nv_add_u32 v{VEC}, s{S_SLOT}, v{VE}\nv_add_u32 v{VOC}, s{S_SLOT}, v{VO}")
        if c.s_nb is not None or mrot: e.i(f"v_add_u32 v{VSC}, s{S_SLOT}, v{VS}")
        e.i(f"""s_add_u32 s{S_SLOT}, s{S_SLOT}, {stage}
        s_cmp_eq_u32 s{S_SLOT}, {S*stage}
        s_cselect_b32 s{S_SLOT}, 0, s{S_SLOT}""")
    e.i("s_barrier")
    st.stamp(e, n + "_b0")
    if st.on: e.i("s_waitcnt lgkmcnt(0)")
    newslot()
    UN = c.unroll
    assert (KT*UN) % 2 == 0 and NT % UN == 0
    step(1, 0, with_mfma=False)
    e.i(f"s_mov_b32 s{S_CNT}, {NT//UN}")
    e.i(f"s_branch {n}_c1")
    lp = f"{n}_cloop"
    e(".p2align 6")
    e.label(lp)
    par = 1
    first = True
    for t in range(UN):
        for ks in range(KT):
            if ks == 0:
                def pre():
                    e.i("s_barrier")
                    newslot()
                step(par, ks, pre=pre)
            else:
                step(par, ks)
            if first:
                e.label(f"{n}_c1"); first = False
            par ^= 1
    e.i(f"""s_sub_u32 s{S_CNT}, s{S_CNT}, 1
    s_cmp_lg_u32 s{S_CNT}, 0
    s_cbranch_scc1 {lp}""")
    step(par, 0, with_reads=False, pre=(lambda: e.i("s_barrier")) if free_barrier else None)
    st.stamp(e, n + "_loop")
    e.i("s_nop 7")
    epilogue(e, c)
```

```python
from gemm import *
S_O, S_A, S_B, S_C = 16, 20, 24, 28
SC = " sc1"

def cfg_qkv():
    c = Cfg(name="qkv", NB=6, KT=2, S=3, unroll=2, rrate=1, K=1024, wstride=6144, korder='natural',
            VACC=128, VF=32, VA=8, e_mul=3, s_nb=None, swap=lambda j: j >= 4, xm=8, xn=4)
    c.lds_total = gemm_lds(c)[2]*c.S
    c.wcol_base = lambda e, s: e.i(f"s_lshl_b32 s{s}, s{S_NB}, 7")
    def wl(e, v, t):
        e.i(f"""v_mul_u32_u24 v{t}, 43, v{v}
        v_lshrrev_b32 v{t}, 7, v{t}
        v_mad_i32_i24 v{v}, v{t}, -3, v{v}
        v_lshlrev_b32 v{v}, 11, v{v}
        v_lshl_add_u32 v{v}, v{t}, 6, v{v}""")
    c.wcol_lane = wl
    c.l_srds = [(S_M, KA_WS, WS_XN, 4*MB), (S_W, KA_WQKV, 0, 1024*3072*2), (S_A, KA_W1, 0, 1024*3584*2), (S_B, KA_WS, WS_CS1, 16*3584*4)]
    c.c_srds = [(S_O, KA_WS, WS_Q, 12*MB)]
    def epi(e, c):
        qs = f2u(math.log2(math.e)/math.sqrt(32.0))
        e.i(f"""s_lshl_b32 s{S_T0}, s{S_NB}, 1
        s_and_b32 s{S_T1}, s{S_WAVE}, 1
        s_add_u32 s{S_T0}, s{S_T0}, s{S_T1}
        s_lshl_b32 s{S_T0}, s{S_T0}, 6
        s_lshl_b32 s{S_T1}, s{S_MB}, 2
        s_add_u32 s{S_T0}, s{S_T0}, s{S_T1}
        s_and_b32 s{S_T1}, s{S_WAVE}, 2
        s_add_u32 s{S_T0}, s{S_T0}, s{S_T1}
        s_lshl_b32 s{S_T0}, s{S_T0}, 11
        v_lshrrev_b32 v1, 5, v0
        v_lshlrev_b32 v1, 10, v1
        v_bfe_u32 v2, v0, 4, 1
        v_lshl_add_u32 v1, v2, 9, v1
        v_add_u32 v1, s{S_T0}, v1
        v_and_b32 v2, 15, v0
        v_lshl_add_u32 v16, v2, 4, v1
        v_bfe_u32 v3, v0, 3, 1
        v_and_b32 v2, 7, v0
        v_lshl_add_u32 v2, v3, 4, v2
        v_lshl_add_u32 v17, v2, 4, v1
        s_mov_b32 s{S_T1}, {4*MB}
        s_mov_b32 s{S_T2}, {8*MB}
        s_mov_b32 s{S_T3}, {qs}
        s_mov_b32 s{S_T4}, {qs}""")
        T = 32
        def pack(t, a, b):
            e.i(f"""v_cvt_pk_bf16_f32 v{t}, v{a}, v{a+1}
            v_cvt_pk_bf16_f32 v{t+1}, v{a+2}, v{a+3}
            v_cvt_pk_bf16_f32 v{t+2}, v{b}, v{b+1}
            v_cvt_pk_bf16_f32 v{t+3}, v{b+2}, v{b+3}""")
        k = 0
        for i in range(4):
            t = T + 4*k; k += 1
            pack(t, acc(c,i,2), acc(c,i,3))
            e.i(f"buffer_store_dwordx4 v[{t}:{t+3}], v17, s[{S_O}:{S_O+3}], s{S_T1} offen offset:{(i&1)*128 + (i>>1)*2048}{SC}")
        for tb in range(2):
            for ab in range(2):
                t = T + 4*k; k += 1
                pack(t, acc(c,2*tb,4+ab), acc(c,2*tb+1,4+ab))
                e.i(f"buffer_store_dwordx4 v[{t}:{t+3}], v16, s[{S_O}:{S_O+3}], s{S_T2} offen offset:{ab*256 + tb*2048}{SC}")
        for i in range(4):
            for j in range(2):
                a = acc(c,i,j)
                e.i(f"v_pk_mul_f32 v[{a}:{a+1}], v[{a}:{a+1}], s[{S_T3}:{S_T4}]\nv_pk_mul_f32 v[{a+2}:{a+3}], v[{a+2}:{a+3}], s[{S_T3}:{S_T4}]")
            t = T + 4*k; k += 1
            pack(t, acc(c,i,0), acc(c,i,1))
            e.i(f"buffer_store_dwordx4 v[{t}:{t+3}], v16, s[{S_O}:{S_O+3}], 0 offen offset:{(i&1)*256 + (i>>1)*2048}{SC}")
    c.epi = epi
    def cs_issue(e):
        e.i(f"""s_sub_u32 s{S_T0}, s{S_WAVE}, 4
        s_lshr_b32 s{S_T1}, s2, 4
        s_lshl_b32 s{S_T1}, s{S_T1}, 6
        v_lshrrev_b32 v48, 3, v0
        v_add_u32 v48, s{S_T1}, v48
        s_mov_b32 s{S_T2}, 7168
        v_mul_lo_u32 v48, v48, s{S_T2}
        v_and_b32 v49, 7, v0
        v_min_u32 v49, 6, v49
        s_mul_i32 s{S_T1}, s{S_T0}, 7
        v_add_u32 v49, s{S_T1}, v49
        s_and_b32 s{S_T1}, s2, 15
        s_mul_i32 s{S_T2}, s{S_T1}, 448
        v_lshl_add_u32 v50, v49, 4, s{S_T2}
        v_add_u32 v48, v48, v50
        s_mov_b32 s{S_T2}, 0""")
        for i in range(8):
            e.i(f"buffer_load_dwordx4 v[{64+4*i}:{67+4*i}], v48, s[{S_A}:{S_A+3}], s{S_T2} offen\ns_add_u32 s{S_T2}, s{S_T2}, {8*7168}")
    def cs_finish(e):
        e.i("s_waitcnt vmcnt(0)")
        for q in range(4):
            e.i(f"v_lshlrev_b32 v{96+2*q}, 16, v{64+q}\nv_and_b32 v{97+2*q}, 0xffff0000, v{64+q}")
        for i in range(1, 8):
            for q in range(4):
                e.i(f"v_lshlrev_b32 v104, 16, v{64+4*i+q}\nv_and_b32 v105, 0xffff0000, v{64+4*i+q}\nv_pk_add_f32 v[{96+2*q}:{97+2*q}], v[{96+2*q}:{97+2*q}], v[104:105]")
        e.i("s_nop 1")
        for r in range(8): e.i(f"v_add_f32_dpp v{96+r}, v{96+r}, v{96+r} row_ror:8 row_mask:0xf bank_mask:0xf")
        for sw in ("v_permlane16_swap_b32", "v_permlane32_swap_b32"):
            for r in range(8): e.i(f"v_mov_b32 v{104+r}, v{96+r}")
            e.i("s_nop 1")
            for r in range(8): e.i(f"{sw} v{104+r}, v{96+r}")
            e.i("s_nop 1")
            for r in range(8): e.i(f"v_add_f32 v{96+r}, v{96+r}, v{104+r}")
        e.i(f"""s_lshr_b32 s{S_T1}, s2, 4
        s_mul_i32 s{S_T1}, s{S_T1}, 14336
        s_and_b32 s{S_T2}, s2, 15
        s_mul_i32 s{S_T2}, s{S_T2}, 896
        s_add_u32 s{S_T1}, s{S_T1}, s{S_T2}
        v_lshl_add_u32 v50, v49, 5, s{S_T1}
        s_mov_b64 s[50:51], exec
        s_mov_b64 exec, 0x7f
        buffer_store_dwordx4 v[96:99], v50, s[{S_B}:{S_B+3}], 0 offen{SC}
        buffer_store_dwordx4 v[100:103], v50, s[{S_B}:{S_B+3}], 0 offen offset:16{SC}
        s_mov_b64 exec, s[50:51]""")
    c.tail_extra = (8, cs_issue); c.cs_finish = cs_finish
    return c

def rm_lane_addr(e, va, vb, base):
    e.i(f"""s_lshr_b32 s{S_T0}, s{S_WAVE}, 1
    s_lshl_b32 s{S_T0}, s{S_T0}, 13
    s_add_u32 s{S_T0}, s{S_T0}, {base}
    s_and_b32 s{S_T1}, s{S_WAVE}, 1
    s_lshl_b32 s{S_T1}, s{S_T1}, 2
    v_and_b32 v1, 15, v0
    v_lshrrev_b32 v2, 1, v1
    v_lshrrev_b32 v3, 5, v0
    v_add_u32 v3, s{S_T1}, v3
    v_lshl_add_u32 v1, v1, 7, s{S_T0}
    v_bfe_u32 v4, v0, 4, 1
    v_lshl_add_u32 v1, v4, 3, v1
    v_xor_b32 v4, v3, v2
    v_lshl_add_u32 v{va}, v4, 4, v1
    v_add_u32 v3, 2, v3
    v_xor_b32 v4, v3, v2
    v_lshl_add_u32 v{vb}, v4, 4, v1""")

def cfg_wo():
    c = Cfg(name="wo", NB=2, KT=2, S=5, unroll=2, rrate=2, K=1024, wstride=2048, korder='att',
            VACC=128, VF=32, VA=8, e_mul=1, s_nb=None, swap=lambda j: False, xm=4, xn=8)
    ring = gemm_lds(c)[2]*c.S
    X0 = ring; SCR = ring + 16384
    c.lds_total = SCR + 2048
    c.wcol_base = lambda e, s: e.i(f"s_lshl_b32 s{s}, s{S_NB}, 7")
    c.wcol_lane = lambda e, v, t: e.i(f"v_lshlrev_b32 v{v}, 6, v{v}")
    c.l_srds = [(S_M, KA_WS, WS_O, 4*MB), (S_W, KA_WO, 0, 2*MB), (S_A, KA_X, 0, 4*MB)]
    c.c_srds = [(S_O, KA_WS, WS_H, 4*MB), (S_B, KA_WS, WS_STAT, 256*1024)]
    def lpre(e):
        e.i(f"""s_lshl_b32 s{S_T1}, s{S_MB}, 7
        s_mul_i32 s{S_T2}, s{S_T0}, {128//NL}
        s_add_u32 s{S_T1}, s{S_T1}, s{S_T2}
        s_lshl_b32 s{S_T1}, s{S_T1}, 11
        s_lshl_b32 s{S_T2}, s{S_NB}, 7
        s_add_u32 s{S_T1}, s{S_T1}, s{S_T2}
        v_lshrrev_b32 v50, 3, v0
        v_lshl_add_u32 v50, v50, 11, s{S_T1}
        v_lshrrev_b32 v51, 4, v0
        v_and_b32 v52, 7, v0
        v_xor_b32 v53, v52, v51
        v_lshl_add_u32 v54, v53, 4, v50
        v_xor_b32 v53, 4, v53
        v_lshl_add_u32 v55, v53, 4, v50
        s_mul_i32 s{S_T2}, s{S_T0}, {16384//NL}
        s_add_u32 m0, s{S_T2}, {X0}
        s_mov_b32 s{S_T1}, 0""")
        for I in range(16//NL):
            e.i(f"buffer_load_dwordx4 v{54 + (I&1)}, s[{S_A}:{S_A+3}], s{S_T1} offen lds")
            e.i(f"s_add_u32 m0, m0, 1024\ns_add_u32 s{S_T1}, s{S_T1}, 16384")
    c.loader_pre = lpre
    def epi(e, c):
        rm_lane_addr(e, 16, 17, X0)
        for i in range(4):
            e.i(f"ds_read_b64 v[{32+4*i}:{33+4*i}], v16 offset:{i*2048}\nds_read_b64 v[{34+4*i}:{35+4*i}], v17 offset:{i*2048}")
        e.i(f"""s_lshl_b32 s{S_T0}, s{S_MB}, 3
        s_and_b32 s{S_T1}, s{S_WAVE}, 2
        s_lshl_b32 s{S_T1}, s{S_T1}, 1
        s_add_u32 s{S_T0}, s{S_T0}, s{S_T1}
        s_lshl_b32 s{S_T0}, s{S_T0}, 5
        s_lshl_b32 s{S_T1}, s{S_NB}, 1
        s_add_u32 s{S_T0}, s{S_T0}, s{S_T1}
        s_and_b32 s{S_T1}, s{S_WAVE}, 1
        s_add_u32 s{S_T0}, s{S_T0}, s{S_T1}
        s_lshl_b32 s{S_T0}, s{S_T0}, 10
        v_lshl_add_u32 v18, v0, 4, s{S_T0}
        s_waitcnt lgkmcnt(0)""")
        for i in range(4):
            a, b = acc(c,i,0), acc(c,i,1)
            x = 32+4*i
            e.i(f"""v_lshlrev_b32 v20, 16, v{x}
            v_and_b32 v21, 0xffff0000, v{x}
            v_lshlrev_b32 v22, 16, v{x+1}
            v_and_b32 v23, 0xffff0000, v{x+1}
            v_lshlrev_b32 v24, 16, v{x+2}
            v_and_b32 v25, 0xffff0000, v{x+2}
            v_lshlrev_b32 v26, 16, v{x+3}
            v_and_b32 v27, 0xffff0000, v{x+3}
            v_pk_add_f32 v[{a}:{a+1}], v[{a}:{a+1}], v[20:21]
            v_pk_add_f32 v[{a+2}:{a+3}], v[{a+2}:{a+3}], v[22:23]
            v_pk_add_f32 v[{b}:{b+1}], v[{b}:{b+1}], v[24:25]
            v_pk_add_f32 v[{b+2}:{b+3}], v[{b+2}:{b+3}], v[26:27]""")
            t = 64 + 4*i
            e.i(f"""v_cvt_pk_bf16_f32 v{t}, v{a}, v{a+1}
            v_cvt_pk_bf16_f32 v{t+1}, v{a+2}, v{a+3}
            v_cvt_pk_bf16_f32 v{t+2}, v{b}, v{b+1}
            v_cvt_pk_bf16_f32 v{t+3}, v{b+2}, v{b+3}
            s_mov_b32 s{S_T1}, {i*32768}
            buffer_store_dwordx4 v[{t}:{t+3}], v18, s[{S_O}:{S_O+3}], s{S_T1} offen{SC}""")
            s1, s2 = 80+2*i, 81+2*i
            e.i(f"""v_pk_add_f32 v[20:21], v[{a}:{a+1}], v[{a+2}:{a+3}]
            v_pk_add_f32 v[22:23], v[{b}:{b+1}], v[{b+2}:{b+3}]
            v_pk_mul_f32 v[24:25], v[{a}:{a+1}], v[{a}:{a+1}]
            v_pk_fma_f32 v[24:25], v[{a+2}:{a+3}], v[{a+2}:{a+3}], v[24:25]
            v_pk_fma_f32 v[24:25], v[{b}:{b+1}], v[{b}:{b+1}], v[24:25]
            v_pk_fma_f32 v[24:25], v[{b+2}:{b+3}], v[{b+2}:{b+3}], v[24:25]
            v_pk_add_f32 v[20:21], v[20:21], v[22:23]
            v_add_f32 v{s2}, v24, v25
            v_add_f32 v{s1}, v20, v21""")
        for sw in ("v_permlane32_swap_b32", "v_permlane16_swap_b32"):
            for r in range(8): e.i(f"v_mov_b32 v{88+r}, v{80+r}")
            e.i("s_nop 1")
            for r in range(8): e.i(f"{sw} v{88+r}, v{80+r}")
            e.i("s_nop 1")
            for r in range(8): e.i(f"v_add_f32 v{80+r}, v{80+r}, v{88+r}")
        e.i(f"""s_and_b32 s{S_T0}, s{S_WAVE}, 1
        s_lshl_b32 s{S_T0}, s{S_T0}, 10
        s_and_b32 s{S_T1}, s{S_WAVE}, 2
        s_lshl_b32 s{S_T1}, s{S_T1}, 8
        s_add_u32 s{S_T0}, s{S_T0}, s{S_T1}
        s_add_u32 s{S_T0}, s{S_T0}, {SCR}
        v_and_b32 v1, 15, v0
        v_lshl_add_u32 v1, v1, 3, s{S_T0}""")
        for i in range(4):
            e.i(f"ds_write_b64 v1, v[{80+2*i}:{81+2*i}] offset:{i*128}")
        e.i("s_waitcnt lgkmcnt(0)\ns_barrier")
        e.i(f"""s_cmp_ge_u32 s{S_WAVE}, 2
        s_cbranch_scc1 wo_nost
        s_lshl_b32 s{S_T0}, s{S_WAVE}, 6
        v_add_u32 v1, s{S_T0}, v0
        v_lshlrev_b32 v2, 3, v1
        v_add_u32 v3, {SCR}, v2
        ds_read_b64 v[20:21], v3
        ds_read_b64 v[22:23], v3 offset:1024
        s_lshl_b32 s{S_T0}, s{S_NB}, 14
        s_lshl_b32 s{S_T1}, s{S_MB}, 10
        s_add_u32 s{S_T0}, s{S_T0}, s{S_T1}
        v_add_u32 v2, s{S_T0}, v2
        s_waitcnt lgkmcnt(0)
        v_pk_add_f32 v[20:21], v[20:21], v[22:23]
        buffer_store_dwordx2 v[20:21], v2, s[{S_B}:{S_B+3}], 0 offen{SC}""")
        e.label("wo_nost")
    c.epi = epi
    return c

def cfg_w1():
    c = Cfg(name="w1", NB=7, KT=2, S=3, unroll=2, rrate=1, K=1024, wstride=7168, korder='perm',
            VACC=128, VF=32, VA=8, e_mul=4, s_nb=3, swap=lambda j: False, xm=8, xn=4)
    ring = gemm_lds(c)[2]*c.S
    ST = ring; CS = ring + 1024; B1 = CS + 896
    c.lds_total = B1 + 896
    c.wcol_base = lambda e, s: e.i(f"s_mul_i32 s{s}, s{S_NB}, 448")
    c.wcol_lane = lambda e, v, t: e.i(f"v_lshlrev_b32 v{v}, 6, v{v}")
    c.l_srds = [(S_M, KA_WS, WS_H, 4*MB), (S_W, KA_W1, 0, 1024*3584*2)]
    c.c_srds = [(S_O, KA_WS, WS_H1, SZ_H1), (S_A, KA_WS, WS_STAT, 256*1024), (S_B, KA_WS, WS_CS1, 16*3584*4), (S_C, KA_B1, 0, 7168)]
    def cpre0(e):
        e.i(f"""s_lshl_b32 s{S_T0}, s{S_WAVE}, 6
        v_add_u32 v16, s{S_T0}, v0
        s_mul_i32 s{S_T0}, s{S_NB}, 896
        v_lshl_add_u32 v20, v16, 2, s{S_T0}
        s_mul_i32 s{S_T0}, s{S_NB}, 448
        v_lshl_add_u32 v21, v16, 1, s{S_T0}""")
        for q in range(16):
            e.i(f"s_mov_b32 s{S_T1}, {q*14336}\nbuffer_load_dword v{56+q}, v20, s[{S_B}:{S_B+3}], s{S_T1} offen")
        e.i(f"buffer_load_ushort v72, v21, s[{S_C}:{S_C+3}], 0 offen")
        e.i("s_waitcnt vmcnt(0)")
        for q in range(1, 16):
            e.i(f"v_add_f32 v56, v56, v{56+q}")
        e.i("v_lshlrev_b32 v72, 16, v72")
    c.consumer_pre0 = cpre0
    def cpre(e):
        e.i(f"""v_lshrrev_b32 v17, 1, v16
        v_and_b32 v18, 1, v16
        s_lshl_b32 s{S_T0}, s{S_MB}, 10
        v_lshl_add_u32 v19, v17, 3, s{S_T0}
        v_lshl_add_u32 v19, v18, 17, v19""")
        for q in range(8):
            e.i(f"s_mov_b32 s{S_T1}, {q*16384}\nbuffer_load_dwordx2 v[{40+2*q}:{41+2*q}], v19, s[{S_A}:{S_A+3}], s{S_T1} offen")
        e.i(f"""v_lshlrev_b32 v22, 2, v16
        v_add_u32 v22, {CS}, v22
        v_cmp_gt_u32 vcc, 224, v16
        s_and_saveexec_b64 s[48:49], vcc
        s_cbranch_execz w1_ncs
        ds_write_b32 v22, v56
        ds_write_b32 v22, v72 offset:{B1-CS}""")
        e.label("w1_ncs")
        e.i("s_mov_b64 exec, s[48:49]\ns_waitcnt vmcnt(0)")
        for q in range(1, 8):
            e.i(f"v_pk_add_f32 v[40:41], v[40:41], v[{40+2*q}:{41+2*q}]")
        e.i(f"""s_nop 1
        v_add_f32_dpp v40, v40, v40 quad_perm:[1,0,3,2] row_mask:0xf bank_mask:0xf
        v_add_f32_dpp v41, v41, v41 quad_perm:[1,0,3,2] row_mask:0xf bank_mask:0xf
        v_mul_f32 v40, 0x3a800000, v40
        v_mul_f32 v41, 0x3a800000, v41
        v_fma_f32 v41, -v40, v40, v41
        v_add_f32 v41, 0x3727c5ac, v41
        v_rsq_f32 v42, v41
        s_nop 0
        v_mul_f32 v43, v40, v42
        v_sub_f32 v43, 0, v43
        v_lshlrev_b32 v22, 3, v17
        v_add_u32 v22, {ST}, v22
        ds_write_b64 v22, v[42:43]
        s_waitcnt lgkmcnt(0)""")
    c.consumer_pre = cpre
    C1 = -2.0*math.log2(math.e)*math.sqrt(2.0/math.pi)
    C2 = C1*0.044715
    def epi(e, c):
        e.i(f"""s_lshr_b32 s{S_T0}, s{S_WAVE}, 1
        s_lshl_b32 s{S_T0}, s{S_T0}, 9
        s_add_u32 s{S_T0}, s{S_T0}, {ST}
        v_and_b32 v1, 15, v0
        v_lshl_add_u32 v1, v1, 3, s{S_T0}""")
        for i in range(4):
            e.i(f"ds_read_b64 v[{16+2*i}:{17+2*i}], v1 offset:{i*128}")
        e.i(f"""s_and_b32 s{S_T0}, s{S_WAVE}, 1
        v_lshrrev_b32 v2, 4, v0
        v_lshlrev_b32 v2, 4, v2
        v_add_u32 v2, {CS}, v2
        s_lshl_b32 s{S_T1}, s{S_T0}, 9
        v_add_u32 v3, s{S_T1}, v2
        s_lshl_b32 s{S_T1}, s{S_T0}, 6
        s_add_u32 s{S_T1}, s{S_T1}, 384
        v_add_u32 v4, s{S_T1}, v2""")
        for j in range(7):
            va, o = (3, j*64) if j < 6 else (4, 0)
            e.i(f"ds_read_b128 v[{32+8*j}:{35+8*j}], v{va} offset:{o}\nds_read_b128 v[{36+8*j}:{39+8*j}], v{va} offset:{B1-CS+o}")
        e.i(f"""s_lshl_b32 s{S_T1}, s{S_MB}, 3
        s_and_b32 s{S_T2}, s{S_WAVE}, 2
        s_lshl_b32 s{S_T2}, s{S_T2}, 1
        s_add_u32 s{S_T1}, s{S_T1}, s{S_T2}
        s_mul_i32 s{S_T1}, s{S_T1}, 112
        s_mul_i32 s{S_T2}, s{S_NB}, 7
        s_add_u32 s{S_T1}, s{S_T1}, s{S_T2}
        s_lshl_b32 s{S_T1}, s{S_T1}, 10
        s_lshl_b32 s{S_T2}, s{S_T0}, 12
        s_add_u32 s{S_T2}, s{S_T2}, s{S_T1}
        v_lshl_add_u32 v5, v0, 4, s{S_T2}
        s_lshl_b32 s{S_T2}, s{S_T0}, 3
        s_add_u32 s{S_T2}, s{S_T2}, s{S_T1}
        s_add_u32 s{S_T2}, s{S_T2}, 3072
        v_lshl_add_u32 v6, v0, 4, s{S_T2}
        s_mov_b32 s52, {f2u(C2)}
        s_mov_b32 s53, {f2u(C2)}
        v_mov_b32 v112, {f2u(C1)}
        v_mov_b32 v113, {f2u(C1)}
        s_waitcnt lgkmcnt(0)""")
        def gelu8(items):
            n_ = len(items); tmp = [96 + 4*k for k in range(n_)]
            for k, (x, cs, b1, st_, d) in enumerate(items):
                e.i(f"v_pk_fma_f32 v[{tmp[k]}:{tmp[k]+1}], v[{cs}:{cs+1}], v[{st_}:{st_+1}], v[{b1}:{b1+1}] op_sel:[0,1,0] op_sel_hi:[1,1,1]")
            for k, (x, cs, b1, st_, d) in enumerate(items):
                e.i(f"v_pk_fma_f32 v[{x}:{x+1}], v[{x}:{x+1}], v[{st_}:{st_+1}], v[{tmp[k]}:{tmp[k]+1}] op_sel_hi:[1,0,1]")
            for k, (x, cs, b1, st_, d) in enumerate(items):
                e.i(f"v_pk_mul_f32 v[{tmp[k]}:{tmp[k]+1}], v[{x}:{x+1}], v[{x}:{x+1}]")
            for k, (x, cs, b1, st_, d) in enumerate(items):
                e.i(f"v_pk_fma_f32 v[{tmp[k]}:{tmp[k]+1}], v[{tmp[k]}:{tmp[k]+1}], s[52:53], v[112:113]")
            for k, (x, cs, b1, st_, d) in enumerate(items):
                e.i(f"v_pk_mul_f32 v[{tmp[k]}:{tmp[k]+1}], v[{tmp[k]}:{tmp[k]+1}], v[{x}:{x+1}]")
            for k in range(n_):
                e.i(f"v_exp_f32 v{tmp[k]}, v{tmp[k]}\nv_exp_f32 v{tmp[k]+1}, v{tmp[k]+1}")
            for k in range(n_):
                e.i(f"v_pk_add_f32 v[{tmp[k]}:{tmp[k]+1}], v[{tmp[k]}:{tmp[k]+1}], 1.0 op_sel_hi:[1,0]")
            for k in range(n_):
                e.i(f"v_rcp_f32 v{tmp[k]}, v{tmp[k]}\nv_rcp_f32 v{tmp[k]+1}, v{tmp[k]+1}")
            for k, (x, cs, b1, st_, d) in enumerate(items):
                e.i(f"v_pk_mul_f32 v[{x}:{x+1}], v[{x}:{x+1}], v[{tmp[k]}:{tmp[k]+1}]")
            for k, (x, cs, b1, st_, d) in enumerate(items):
                e.i(f"v_cvt_pk_bf16_f32 v{d}, v{x}, v{x+1}")
        k = 0
        for jp in range(3):
            for i in range(4):
                t = 116 + 4*(k % 2); k += 1
                items = []
                for jj in range(2):
                    j = 2*jp + jj
                    for h in range(2):
                        items.append((acc(c,i,j)+2*h, 32+8*j+2*h, 36+8*j+2*h, 16+2*i, t+2*jj+h))
                gelu8(items)
                e.i(f"s_mov_b32 s{S_T1}, {i*112*1024 + jp*1024}\nbuffer_store_dwordx4 v[{t}:{t+3}], v5, s[{S_O}:{S_O+3}], s{S_T1} offen{SC}")
        for ip in range(2):
            t = 116 + 4*(k % 2); k += 1
            items = []
            for ii in range(2):
                i = 2*ip + ii
                for h in range(2):
                    items.append((acc(c,i,6)+2*h, 32+8*6+2*h, 36+8*6+2*h, 16+2*i, t+2*ii+h))
            gelu8(items)
            for ii in range(2):
                i = 2*ip + ii
                e.i(f"s_mov_b32 s{S_T1}, {i*112*1024}\nbuffer_store_dwordx2 v[{t+2*ii}:{t+2*ii+1}], v6, s[{S_O}:{S_O+3}], s{S_T1} offen{SC}")
    c.epi = epi
    return c

def cfg_w2():
    c = Cfg(name="w2", NB=4, KT=2, S=4, unroll=2, rrate=1, K=1792, NKS=112, wstride=2048, korder='perm', splitk=True,
            VACC=128, VF=32, VA=8, e_mul=2, s_nb=None, swap=lambda j: False)
    ring = gemm_lds(c)[2]*c.S
    X0 = ring
    c.lds_total = X0 + 16384
    def wmap(e):
        e.i(f"""s_bfe_u32 s{S_KH}, s2, 0x10002
        s_and_b32 s{S_MB}, s2, 1
        s_lshl_b32 s{S_MB}, s{S_MB}, 3
        s_bfe_u32 s{S_T0}, s2, 0x30003
        s_add_u32 s{S_MB}, s{S_MB}, s{S_T0}
        s_bfe_u32 s{S_NB}, s2, 0x10001
        s_lshl_b32 s{S_NB}, s{S_NB}, 2
        s_lshr_b32 s{S_T0}, s2, 6
        s_add_u32 s{S_NB}, s{S_NB}, s{S_T0}""")
    c.map = wmap
    c.wcol_base = lambda e, s: e.i(f"s_lshl_b32 s{s}, s{S_NB}, 8")
    c.wcol_lane = lambda e, v, t: e.i(f"v_lshlrev_b32 v{v}, 6, v{v}")
    c.l_srds = [(S_M, KA_WS, WS_H1, SZ_H1), (S_W, KA_W2, 0, 3584*2048)]
    c.c_srds = [(S_O, KA_OUT, 0, 4*MB), (S_A, KA_WS, WS_H, 4*MB), (S_B, KA_B2, 0, 2048), (S_C, KA_WS, WS_XB, 8*MB)]
    VH, VB = 96, 112
    def cpre(e):
        e.i(f"""s_lshl_b32 s{S_T0}, s{S_MB}, 3
        s_and_b32 s{S_T1}, s{S_WAVE}, 2
        s_lshl_b32 s{S_T1}, s{S_T1}, 1
        s_add_u32 s{S_T0}, s{S_T0}, s{S_T1}
        s_lshl_b32 s{S_T1}, s{S_KH}, 1
        s_add_u32 s{S_T0}, s{S_T0}, s{S_T1}
        s_lshl_b32 s{S_T0}, s{S_T0}, 5
        s_lshl_b32 s{S_T1}, s{S_NB}, 2
        s_add_u32 s{S_T0}, s{S_T0}, s{S_T1}
        s_and_b32 s{S_T1}, s{S_WAVE}, 1
        s_lshl_b32 s{S_T1}, s{S_T1}, 1
        s_add_u32 s{S_T0}, s{S_T0}, s{S_T1}
        s_lshl_b32 s{S_T0}, s{S_T0}, 10
        v_lshl_add_u32 v18, v0, 4, s{S_T0}""")
        for i in range(2):
            for jp in range(2):
                r = VH + 4*(2*i+jp)
                e.i(f"s_mov_b32 s{S_T1}, {i*32768}\nbuffer_load_dwordx4 v[{r}:{r+3}], v18, s[{S_A}:{S_A+3}], s{S_T1} offen offset:{jp*1024}")
        e.i(f"""s_lshl_b32 s{S_T0}, s{S_NB}, 8
        s_and_b32 s{S_T1}, s{S_WAVE}, 1
        s_lshl_b32 s{S_T1}, s{S_T1}, 7
        s_add_u32 s{S_T0}, s{S_T0}, s{S_T1}
        v_lshrrev_b32 v19, 4, v0
        v_lshl_add_u32 v19, v19, 3, s{S_T0}""")
        for j in range(4):
            e.i(f"buffer_load_dwordx2 v[{VB+2*j}:{VB+2*j+1}], v19, s[{S_B}:{S_B+3}], 0 offen offset:{32*j}")
    c.consumer_pre = cpre
    def epi(e, c):
        e.i(f"""s_lshl_b32 s{S_T0}, s{S_MB}, 3
        s_add_u32 s{S_T0}, s{S_T0}, s{S_NB}
        s_lshl_b32 s{S_T0}, s{S_T0}, 1
        s_add_u32 s{S_T1}, s{S_T0}, s{S_KH}
        s_xor_b32 s{S_T2}, s{S_T1}, 1
        s_lshl_b32 s{S_T1}, s{S_T1}, 15
        s_lshl_b32 s{S_T2}, s{S_T2}, 15
        s_lshl_b32 s{S_T0}, s{S_WAVE}, 13
        s_add_u32 s{S_T1}, s{S_T1}, s{S_T0}
        s_add_u32 s{S_T2}, s{S_T2}, s{S_T0}
        v_lshl_add_u32 v20, v0, 4, s{S_T2}
        v_lshl_add_u32 v21, v0, 4, s{S_T1}""")
        for i in range(2):
            for j in range(4):
                a = acc(c, 2+i, j); b = i*4+j
                e.i(f"s_mov_b32 s{S_T0}, {(b>>2)*4096}\nbuffer_store_dwordx4 v[{a}:{a+3}], v20, s[{S_C}:{S_C+3}], s{S_T0} offen offset:{(b&3)*1024} sc1")
        rm2_addr(e)
        e.i(f"""s_waitcnt vmcnt(0)
        s_lshl_b32 s{S_T0}, s2, 2
        s_add_u32 s{S_T0}, s{S_T0}, s{S_WAVE}
        s_lshl_b32 s{S_T0}, s{S_T0}, 7
        s_add_u32 s{S_T0}, s{S_T0}, {FL_X}
        v_mov_b32 v2, s{S_T0}
        v_mov_b32 v3, 1
        s_mov_b64 s[50:51], exec
        s_mov_b64 exec, 1
        buffer_store_dword v3, v2, s[{S_FLP}:{S_FLP+3}], 0 offen sc1
        s_mov_b64 exec, s[50:51]
        s_xor_b32 s{S_T0}, s2, 4
        s_lshl_b32 s{S_T0}, s{S_T0}, 2
        s_add_u32 s{S_T0}, s{S_T0}, s{S_WAVE}
        s_lshl_b32 s{S_T0}, s{S_T0}, 7
        s_add_u32 s{S_T0}, s{S_T0}, {FL_X}
        v_mov_b32 v2, s{S_T0}
        s_mov_b32 s{S_T0}, 0x8000""")
        e.label("w2_xp")
        e.i(f"""buffer_load_dword v3, v2, s[{S_FLP}:{S_FLP+3}], 0 offen sc1
        s_sub_u32 s{S_T0}, s{S_T0}, 1
        s_cmp_eq_u32 s{S_T0}, 0
        s_cbranch_scc1 w2_xp_x
        s_waitcnt vmcnt(0)
        v_cmp_ne_u32 vcc, 1, v3
        s_nop 4
        s_cbranch_vccnz w2_xp""")
        e.label("w2_xp_x")
        e.i("s_waitcnt vmcnt(0)")
        for b in range(8):
            r = 32 + 4*b
            e.i(f"s_mov_b32 s{S_T0}, {(b>>2)*4096}\nbuffer_load_dwordx4 v[{r}:{r+3}], v21, s[{S_C}:{S_C+3}], s{S_T0} offen offset:{(b&3)*1024} sc1")
        for j in range(4):
            for q in range(2):
                e.i(f"v_lshlrev_b32 v{64+4*j+2*q}, 16, v{VB+2*j+q}\nv_and_b32 v{65+4*j+2*q}, 0xffff0000, v{VB+2*j+q}")
        for i in range(2):
            for j in range(4):
                a = acc(c, i, j); x = VH + 4*(2*i + (j>>1)) + 2*(j&1)
                e.i(f"""v_lshlrev_b32 v22, 16, v{x}
                v_and_b32 v23, 0xffff0000, v{x}
                v_lshlrev_b32 v24, 16, v{x+1}
                v_and_b32 v25, 0xffff0000, v{x+1}
                v_pk_add_f32 v[{a}:{a+1}], v[{a}:{a+1}], v[{64+4*j}:{65+4*j}]
                v_pk_add_f32 v[{a+2}:{a+3}], v[{a+2}:{a+3}], v[{66+4*j}:{67+4*j}]
                v_pk_add_f32 v[{a}:{a+1}], v[{a}:{a+1}], v[22:23]
                v_pk_add_f32 v[{a+2}:{a+3}], v[{a+2}:{a+3}], v[24:25]""")
        for i in range(2):
            for j in range(4):
                b = i*4+j; a = acc(c, i, j); r = 32+4*b; t = 80 + 2*(b & 3)
                e.i(f"""s_waitcnt vmcnt({7-b})
                v_pk_add_f32 v[{a}:{a+1}], v[{a}:{a+1}], v[{r}:{r+1}]
                v_pk_add_f32 v[{a+2}:{a+3}], v[{a+2}:{a+3}], v[{r+2}:{r+3}]
                v_cvt_pk_bf16_f32 v{t}, v{a}, v{a+1}
                v_cvt_pk_bf16_f32 v{t+1}, v{a+2}, v{a+3}
                v_xor_b32 v26, {j*32}, v16
                ds_write_b64 v26, v[{t}:{t+1}] offset:{i*4096}""")
        e.i("s_waitcnt lgkmcnt(0)\ns_barrier")
        e.i(f"""s_lshl_b32 s{S_T0}, s{S_WAVE}, 12
        s_add_u32 s{S_T0}, s{S_T0}, {X0}
        v_lshl_add_u32 v1, v0, 4, s{S_T0}""")
        for q in range(4):
            e.i(f"ds_read_b128 v[{32+4*q}:{35+4*q}], v1 offset:{q*1024}")
        e.i(f"""s_lshl_b32 s{S_T0}, s{S_MB}, 7
        s_and_b32 s{S_T1}, s{S_WAVE}, 2
        s_lshl_b32 s{S_T1}, s{S_T1}, 5
        s_add_u32 s{S_T0}, s{S_T0}, s{S_T1}
        s_lshl_b32 s{S_T1}, s{S_KH}, 5
        s_add_u32 s{S_T0}, s{S_T0}, s{S_T1}
        s_and_b32 s{S_T1}, s{S_WAVE}, 1
        s_lshl_b32 s{S_T1}, s{S_T1}, 4
        s_add_u32 s{S_T0}, s{S_T0}, s{S_T1}
        s_lshl_b32 s{S_T0}, s{S_T0}, 11
        s_lshl_b32 s{S_T1}, s{S_NB}, 8
        s_add_u32 s{S_T0}, s{S_T0}, s{S_T1}
        v_lshrrev_b32 v2, 4, v0
        v_and_b32 v4, 15, v0
        v_xor_b32 v3, v2, v4
        v_lshl_add_u32 v2, v2, 11, s{S_T0}""")
        for q in range(4):
            e.i(f"""v_xor_b32 v4, {4*q}, v3
            v_lshl_add_u32 v{5+q}, v4, 4, v2
            s_waitcnt lgkmcnt({3-q})
            s_mov_b32 s{S_T1}, {q*4*2048}
            buffer_store_dwordx4 v[{32+4*q}:{35+4*q}], v{5+q}, s[{S_O}:{S_O+3}], s{S_T1} offen""")
    def rm2_addr(e):
        e.i(f"""s_lshr_b32 s{S_T0}, s{S_WAVE}, 1
        s_lshl_b32 s{S_T0}, s{S_T0}, 13
        s_add_u32 s{S_T0}, s{S_T0}, {X0}
        s_and_b32 s{S_T1}, s{S_WAVE}, 1
        s_lshl_b32 s{S_T1}, s{S_T1}, 3
        v_and_b32 v1, 15, v0
        v_lshrrev_b32 v4, 5, v0
        v_add_u32 v4, s{S_T1}, v4
        v_xor_b32 v4, v4, v1
        v_lshlrev_b32 v4, 4, v4
        v_lshl_add_u32 v4, v1, 8, v4
        v_bfe_u32 v1, v0, 4, 1
        v_lshl_add_u32 v4, v1, 3, v4
        v_add_u32 v16, s{S_T0}, v4""")
    c.epi = epi
    return c
```

```python
from common import *
import os
PF_CODE = os.environ.get('PFC', '1') == '1'
def gen_ln1(e, name, stamps=False):
    st = Stamps(stamps, 0)
    kernel_head(e, name)
    e.i(f"s_cmp_ge_u32 s2, 256\ns_cbranch_scc1 {name}_end")
    fx = load_srd(e, 8, KA_X, 0, 4*MB)
    fo = load_srd(e, 12, KA_WS, WS_XN, 4*MB)
    ff = load_srd(e, 16, KA_WS, WS_FL, SZ_FL)
    fq = load_srd(e, 28, KA_WQKV, 0, 1024*3072*2)
    st.init(e); st.stamp(e, "start")
    e.i("""v_and_b32 v1, 63, v0
    v_lshrrev_b32 v2, 6, v0
    v_lshrrev_b32 v3, 5, v1
    v_and_b32 v4, 31, v1
    v_lshl_add_u32 v5, v2, 1, v3
    s_lshl_b32 s3, s2, 3
    v_add_u32 v6, s3, v5
    v_lshlrev_b32 v6, 11, v6
    v_lshl_add_u32 v6, v4, 4, v6
    v_readfirstlane_b32 s24, v2
    s_waitcnt lgkmcnt(0)""")
    fx()
    for j in range(4):
        e.i(f"buffer_load_dwordx4 v[{16+4*j}:{19+4*j}], v6, s[8:11], 0 offen offset:{512*j}")
    fo(); ff(); fq()
    e.i("""s_lshr_b32 s4, s2, 3
    s_mul_i32 s4, s4, 384
    v_add_u32 v56, s4, v0
    v_mul_u32_u24 v57, 43691, v56
    v_lshrrev_b32 v57, 19, v57
    v_mul_u32_u24 v58, 12, v57
    v_sub_u32 v58, v56, v58
    v_lshrrev_b32 v59, 2, v58
    v_and_b32 v58, 3, v58
    v_mul_u32_u24 v57, 6144, v57
    v_lshl_add_u32 v57, v59, 11, v57
    v_lshl_add_u32 v57, v58, 7, v57
    s_and_b32 s4, s2, 7
    s_lshr_b32 s4, s4, 1
    s_lshl_b32 s4, s4, 9
    v_add_u32 v57, s4, v57
    buffer_load_dword v60, v57, s[28:31], 0 offen
    v_add_u32 v56, 256, v56
    v_mul_u32_u24 v58, 43691, v56
    v_lshrrev_b32 v58, 19, v58
    v_mul_u32_u24 v59, 12, v58
    v_sub_u32 v59, v56, v59
    v_lshrrev_b32 v61, 2, v59
    v_and_b32 v59, 3, v59
    v_mul_u32_u24 v58, 6144, v58
    v_lshl_add_u32 v58, v61, 11, v58
    v_lshl_add_u32 v58, v59, 7, v58
    v_add_u32 v58, s4, v58
    v_cmp_gt_u32 vcc, 128, v0
    s_nop 1
    v_cndmask_b32 v58, v57, v58, vcc
    buffer_load_dword v61, v58, s[28:31], 0 offen""")
    e.i(f"""s_lshl_b32 s4, s2, 11
    v_lshl_add_u32 v62, v0, 3, s4
    v_mov_b32 v64, 0
    v_mov_b32 v65, 0
    buffer_store_dwordx2 v[64:65], v62, s[16:19], 0 offen sc1""")
    assert SZ_FL == 512*1024
    e.i("s_waitcnt vmcnt(3)")
    for r in range(16):
        e.i(f"v_lshlrev_b32 v{96+2*r}, 16, v{16+r}\nv_and_b32 v{97+2*r}, 0xffff0000, v{16+r}")
    def allreduce32(v, t):
        e.i(f"""s_nop 1
        v_add_f32_dpp v{v}, v{v}, v{v} quad_perm:[1,0,3,2] row_mask:0xf bank_mask:0xf
        s_nop 1
        v_add_f32_dpp v{v}, v{v}, v{v} quad_perm:[2,3,0,1] row_mask:0xf bank_mask:0xf
        s_nop 1
        v_add_f32_dpp v{v}, v{v}, v{v} row_half_mirror row_mask:0xf bank_mask:0xf
        s_nop 1
        v_add_f32_dpp v{v}, v{v}, v{v} row_mirror row_mask:0xf bank_mask:0xf
        s_nop 1
        v_mov_b32 v{t}, v{v}
        s_nop 1
        v_permlane16_swap_b32 v{t}, v{v}
        s_nop 1
        v_add_f32 v{v}, v{t}, v{v}""")
    e.i("v_pk_add_f32 v[10:11], v[96:97], v[98:99]")
    for r in range(2, 16):
        e.i(f"v_pk_add_f32 v[10:11], v[10:11], v[{96+2*r}:{97+2*r}]")
    e.i("v_add_f32 v10, v10, v11")
    allreduce32(10, 11)
    e.i("v_mul_f32 v10, 0x3a800000, v10")
    e.i("v_mov_b32 v11, v10")
    for r in range(16):
        e.i(f"v_pk_add_f32 v[{96+2*r}:{97+2*r}], v[{96+2*r}:{97+2*r}], v[10:11] neg_lo:[0,1] neg_hi:[0,1]")
    e.i("v_pk_mul_f32 v[12:13], v[96:97], v[96:97]")
    for r in range(1, 16):
        e.i(f"v_pk_fma_f32 v[12:13], v[{96+2*r}:{97+2*r}], v[{96+2*r}:{97+2*r}], v[12:13]")
    e.i("v_add_f32 v12, v12, v13")
    allreduce32(12, 13)
    e.i("""v_mov_b32 v13, 0x3727c5ac
    v_fmac_f32 v13, 0x3a800000, v12
    v_rsq_f32 v12, v13
    s_nop 0
    v_mov_b32 v13, v12""")
    for r in range(16):
        e.i(f"v_pk_mul_f32 v[{96+2*r}:{97+2*r}], v[{96+2*r}:{97+2*r}], v[12:13]")
    for r in range(16):
        e.i(f"v_cvt_pk_bf16_f32 v{16+r}, v{96+2*r}, v{97+2*r}")
    e.i("""s_lshr_b32 s4, s2, 1
    s_lshl_b32 s4, s4, 15
    s_and_b32 s5, s2, 1
    s_lshl_b32 s5, s5, 7
    s_add_u32 s4, s4, s5
    v_lshl_add_u32 v14, v5, 4, s4
    v_lshrrev_b32 v15, 2, v4
    v_lshl_add_u32 v14, v15, 10, v14
    v_and_b32 v15, 3, v4
    v_lshl_add_u32 v14, v15, 8, v14""")
    for j in range(4):
        e.i(f"buffer_store_dwordx4 v[{16+4*j}:{19+4*j}], v14, s[12:15], 0 offen\nv_add_u32 v14, 8192, v14")
    if PF_CODE:
        e.i(f"s_cmp_lg_u32 s24, 3\ns_cbranch_scc1 {name}_ncp")
        e.i("v_and_b32 v0, 63, v0")
        emit_code_prefetch(e, "main_kernel", "main_kernel_codeend", 256, 32, 64, "k0")
        e.i("v_or_b32 v0, 192, v0")
        e.label(f"{name}_ncp")
    if stamps:
        e.i("s_waitcnt vmcnt(0)")
        st.stamp(e, "end"); st.flush(e, 24)
    e.label(f"{name}_end")
    e.i("s_endpgm")
    kernel_desc(e, name, 128)
    return dict(name=name, grid=256, block=256, lds=0, vgpr=128, sidx=0, stamps=st.names)
```
